```python
import torch

def _softmax(x, axis=-1):
    return torch.softmax(x, dim=axis)
def _gelu(x):
    return torch.nn.functional.gelu(x, approximate="tanh")
def _silu(x):
    return torch.nn.functional.silu(x)
def _sigmoid(x):
    return torch.sigmoid(x)
def _layernorm(x, axis=-1, eps=1e-5):
    m = x.mean(dim=axis, keepdim=True)
    v = x.var(dim=axis, keepdim=True, unbiased=False)
    return (x - m) / torch.sqrt(v + eps)
def _scatter_add(tgt, idx, src, axis=0):
    return tgt.clone().index_add_(axis, idx, src)
def _segment_sum(src, seg, n):
    out = torch.zeros((n,) + src.shape[1:], dtype=src.dtype)
    return out.index_add_(0, seg, src)
def _pad(x, pw):
    flat = tuple(v for pair in reversed(pw) for v in pair)
    return torch.nn.functional.pad(x, flat)

kernel_name = 'standalone__gqa_softmax__sampling'

def setup_inputs():

    _w = (lambda a: (lambda t: t.to(torch.bfloat16) if t.is_floating_point() else t)(torch.as_tensor(a)))
    B, Hq, Hkv, Sq, Sk, D = 16, 32, 8, 4, 2048, 128
    return {
        "q": _w((lambda *s: torch.randn(*s, dtype=torch.bfloat16) * 0.8)(B, Hq, Sq, D)),
        "k": _w((lambda *s: torch.randn(*s, dtype=torch.bfloat16) * 0.8)(B, Hkv, Sk, D)),
        "v": _w((lambda *s: torch.randn(*s, dtype=torch.bfloat16) * 0.05)(B, Hkv, Sk, D)),
    }

def reference(q, k, v):
    B, Hq, Sq, D = q.shape
    Hkv = k.shape[1]
    rep = Hq // Hkv
    k = (lambda x, n, axis: torch.repeat_interleave(x, n, dim=axis))(k, rep, axis=1)
    v = (lambda x, n, axis: torch.repeat_interleave(x, n, dim=axis))(v, rep, axis=1)
    scale = D ** -0.5
    scores = torch.einsum("bhqd,bhkd->bhqk", q, k) * scale
    p = _softmax(scores, axis=-1)
    return torch.einsum("bhqk,bhkd->bhqd", p, v)
```

```python
import sys, struct
KN = "standalone__gqa_softmax__sampling_kernel"
HDR = open("standalone__gqa_softmax__sampling.s.ref").read().split("; Override")[0]
def f2u(x): return struct.unpack("<I", struct.pack("<f", x))[0]
CSC = f2u(128 ** -0.5 * 1.4426950408889634)

def gen(path, W=4, RK=3, RV=2, kpol="", vpol="nt", stamp=False, adj=False, dry=False, qlate=False, skip=True):
    L = []; A = L.append
    NSTEP = 2048 // 32 // W
    WL = RK * 8192 + RV * 4096
    IMG = W * WL
    IW = 4096 + 128
    LDS = IMG + W * IW
    assert LDS <= 163840
    lw = W.bit_length() - 1
    def ST(k):
        if stamp: A("s_memrealtime s[%d:%d]\ns_waitcnt lgkmcnt(0)" % (60 + 2 * k, 61 + 2 * k))
    A(HDR.rstrip())
    A("; @launch grid=(256,1,1) block=(%d,1,1) lds=%d" % (W * 64, LDS))
    A('.amdgcn_target "amdgcn-amd-amdhsa--gfx950"')
    A(".text\n.globl %s\n.p2align 8\n.type %s,@function\n%s:" % (KN, KN, KN))
    A("s_load_dwordx4 s[4:7], s[0:1], 0")
    A("s_load_dwordx4 s[8:11], s[0:1], 16")
    if stamp:
        A("s_load_dwordx2 s[40:41], s[0:1], 40")
        A("s_memrealtime s[60:61]")
        for k in range(1, 14): A("s_mov_b32 s%d, 0" % (60 + 2 * k))
    A("s_cmp_ge_u32 s2, 256")
    A("s_cbranch_scc1 L_end")
    A("v_lshrrev_b32 v1, 6, v0")
    A("v_and_b32 v5, 63, v0")
    A("v_readfirstlane_b32 s3, v1")
    A("v_and_b32 v6, 15, v5")
    A("v_lshrrev_b32 v7, 4, v5")
    A("s_lshr_b32 s28, s2, 4\ns_lshl_b32 s28, s28, 3\ns_and_b32 s29, s2, 7\ns_add_u32 s28, s28, s29")
    A("s_bfe_u32 s30, s2, 0x10003")
    A("s_lshl_b32 s29, s28, 19")
    A("s_lshl_b32 s28, s28, 12")
    A("v_xor_b32 v8, v6, v7")
    A("v_lshlrev_b32 v12, 4, v8")
    A("v_lshl_add_u32 v8, v7, 8, v12")
    A("v_xor_b32 v9, 64, v8\nv_xor_b32 v10, 0x80, v8\nv_xor_b32 v11, 0xc0, v8")
    A("v_lshrrev_b32 v2, 3, v5")
    A("v_and_b32 v3, 6, v2")
    A("v_and_b32 v4, 7, v5")
    A("v_xor_b32 v4, v4, v3")
    A("v_lshlrev_b32 v4, 4, v4")
    A("v_lshl_add_u32 v4, v2, 8, v4")
    A("s_lshl_b32 s44, s30, 7")
    A("v_add_u32 v4, s44, v4")
    A("v_lshlrev_b32 v3, 8, v6")
    A("v_lshl_add_u32 v3, v7, 4, v3")
    A("s_mul_i32 s39, s3, %d" % WL)
    tstride = 4096 if adj else W * 4096
    A("s_lshl_b32 s34, s3, %d" % (13 if adj else 12))
    A("s_mov_b32 s35, s34")
    A("s_mov_b32 s31, 0x%x" % CSC)
    A("s_mov_b32 s18, 0x80000\ns_mov_b32 s19, 0x20000\ns_mov_b32 s22, 0x80000\ns_mov_b32 s23, 0x20000")
    A("s_mov_b32 s14, 0x80000\ns_mov_b32 s15, 0x20000")
    A("s_mov_b32 m0, s39")
    if stamp: A("s_memrealtime s[84:85]")
    A("s_waitcnt lgkmcnt(0)")
    ST(10)
    A("s_add_u32 s16, s6, s29\ns_addc_u32 s17, s7, 0")
    A("s_add_u32 s20, s8, s29\ns_addc_u32 s21, s9, 0")
    STEPB = W * 8192
    def kload():
        for i in range(4):
            A("buffer_load_dwordx4 v%d, s[16:19], s34 offen offset:%d %s lds" % (8 + i, i * 1024, kpol))
        A("s_add_u32 m0, m0, 4096")
        A("s_add_u32 s44, s34, %d" % tstride)
        for i in range(4):
            A("buffer_load_dwordx4 v%d, s[16:19], s44 offen offset:%d %s lds" % (8 + i, i * 1024, kpol))
        A("s_add_u32 s34, s34, %d" % STEPB)
    def vload():
        A("s_add_u32 s44, s35, 1024")
        A("s_add_u32 s45, s35, %d" % (tstride - 2048))
        A("s_add_u32 s46, s35, %d" % (tstride - 1024))
        A("buffer_load_dwordx4 v4, s[20:23], s35 offen %s lds" % vpol)
        A("buffer_load_dwordx4 v4, s[20:23], s44 offen offset:1024 %s lds" % vpol)
        A("buffer_load_dwordx4 v4, s[20:23], s45 offen offset:2048 %s lds" % vpol)
        A("buffer_load_dwordx4 v4, s[20:23], s46 offen offset:3072 %s lds" % vpol)
        A("s_add_u32 s35, s35, %d" % STEPB)
    def qload():
        A("s_mov_b32 s12, s4\ns_mov_b32 s13, s5")
        for j in range(4):
            A("buffer_load_dwordx4 v[%d:%d], v3, s[12:15], s28 offen offset:%d" % (Q + 4 * j, Q + 4 * j + 3, 64 * j))
    Q = 16; KF = 32; S = 64; P = 72; VF = 76; O = 92
    order = []
    lead = RK - RV
    ki = vi = 0
    for _ in range(lead):
        order.append(("K", ki)); ki += 1
    while vi < RV:
        if ki < RK: order.append(("K", ki)); ki += 1
        order.append(("V", vi)); vi += 1
    first = True
    for kind, idx in order:
        if kind == "K":
            if not first: A("s_add_u32 m0, s39, %d\ns_nop 0" % (idx * 8192))
            kload()
            if first: ST(11)
            if first: qload()
            first = False
        else:
            A("s_add_u32 m0, s39, %d" % (RK * 8192 + idx * 4096))
            vload()
    ST(1)
    nafter = sum(8 if k == "K" else 4 for k, _ in order[1:])
    A("v_lshl_add_u32 v12, v6, 8, v12")
    A("v_add_u32 v12, s39, v12")
    A("v_xor_b32 v13, 64, v12\nv_xor_b32 v14, 0x80, v12\nv_xor_b32 v15, 0xc0, v12")
    VA = 108
    A("v_lshrrev_b32 v2, 2, v5")
    A("v_and_b32 v3, 6, v2")
    A("v_bfe_u32 v1, v5, 1, 1")
    A("v_xor_b32 v3, v3, v1")
    A("v_lshlrev_b32 v3, 4, v3")
    A("v_lshl_add_u32 v3, v2, 7, v3")
    A("v_and_b32 v1, 1, v5")
    A("v_lshl_add_u32 v3, v1, 3, v3")
    A("s_add_u32 s44, s39, %d" % (RK * 8192))
    A("v_add_u32 v%d, s44, v3" % VA)
    for e in range(1, 4):
        A("v_xor_b32 v%d, %d, v%d" % (VA + e, 32 * e, VA))
    A("s_mul_i32 s44, s3, %d\ns_add_u32 s44, s44, %d" % (IW, IMG))
    A("v_lshlrev_b32 v124, 4, v5")
    A("v_add_u32 v122, s44, v124")
    A("v_lshlrev_b32 v125, 3, v6")
    A("v_add_u32 v123, s44, v125")
    A("v_add_u32 v125, %d, v125" % (IMG + 4096))
    if W <= 4:
        A("s_lshl_b32 s44, s3, %d\ns_add_u32 s44, s44, %d" % (12 - lw, IMG))
        A("s_lshl_b32 s47, s3, %d" % (7 - lw))
    else:
        A("s_lshr_b32 s44, s3, 1\ns_lshl_b32 s47, s44, 5\ns_lshl_b32 s44, s44, 10\ns_and_b32 s45, s3, 1\ns_lshl_b32 s45, s45, 2\ns_add_u32 s47, s47, s45\ns_lshl_b32 s45, s45, 1\ns_add_u32 s44, s44, s45\ns_add_u32 s44, s44, %d" % IMG)
    A("v_add_u32 v124, s44, v124")
    A("v_lshlrev_b32 v126, 8, v6")
    A("v_lshl_add_u32 v126, v7, 3, v126")
    A("s_lshl_b32 s45, s30, 7\ns_add_u32 s47, s47, s45\ns_add_u32 s47, s47, s28")
    A("s_mov_b32 s24, s10\ns_mov_b32 s25, s11\ns_mov_b32 s26, 0x80000\ns_mov_b32 s27, 0x20000")
    A("s_mov_b32 s36, 0\ns_mov_b32 s37, 0")
    if dry:
        A("s_mov_b32 s38, 1")
        A("s_branch L_epi")
        A("L_back:")
    for k in range(16): A("v_mov_b32 v%d, 0" % (O + k))
    A("v_mov_b32 v1, 0xff800000")
    A("v_mov_b32 v2, 0")
    A("s_mov_b32 s38, %d" % NSTEP)
    ST(9)
    A("s_waitcnt vmcnt(%d)" % nafter)
    ST(2)
    A(".p2align 3")
    A("L_loop:")
    if lead == 0:
        if skip:
            A("s_cmp_ge_u32 s38, %d\ns_cbranch_scc1 L_tfull" % RK)
            for r in range(RK - 1, 0, -1):
                if r > 1: A("s_cmp_lg_u32 s38, %d\ns_cbranch_scc1 L_t%d" % (r, r - 1))
                A("s_waitcnt vmcnt(%d)\ns_branch L_tdone" % (4 + (r - 1) * 12))
                if r > 1: A("L_t%d:" % (r - 1))
            A("L_tfull:")
        A("s_waitcnt vmcnt(%d)" % (4 + (RK - 1) * 12))
        if skip: A("L_tdone:")
    for j in range(4): A("v_add_u32 v%d, s36, v%d" % (112 + j, 12 + j))
    for tt in range(2):
        for j in range(4):
            r = KF + 16 * tt + 4 * j
            A("ds_read_b128 v[%d:%d], v%d offset:%d" % (r, r + 3, 112 + j, tt * 4096))
    for e in range(4): A("v_add_u32 v%d, s37, v%d" % (116 + e, VA + e))
    A("s_add_u32 m0, s39, s36")
    A("s_add_u32 s36, s36, 8192\ns_cmp_eq_u32 s36, %d\ns_cselect_b32 s36, 0, s36" % (RK * 8192))
    for tt in range(2):
        for j in range(4):
            r = KF + 16 * tt + 4 * j
            A("s_waitcnt lgkmcnt(%d)" % (7 - 4 * tt - j))
            c = "0" if j == 0 else "v[%d:%d]" % (S + 4 * tt, S + 4 * tt + 3)
            A("v_mfma_f32_16x16x32_bf16 v[%d:%d], v[%d:%d], v[%d:%d], %s" % (S + 4 * tt, S + 4 * tt + 3, r, r + 3, Q + 4 * j, Q + 4 * j + 3, c))
    if skip:
        A("s_cmp_le_u32 s38, %d\ns_cbranch_scc1 L_nok" % RK)
        kload()
        A("L_nok:\ns_nop 6")
    else:
        kload()
    A("v_max3_f32 v3, v%d, v%d, v%d" % (S, S + 1, S + 2))
    A("v_max3_f32 v3, v3, v%d, v%d" % (S + 3, S + 4))
    A("v_max3_f32 v3, v3, v%d, v%d" % (S + 5, S + 6))
    A("v_max_f32 v3, v3, v%d" % (S + 7))
    A("v_mov_b32 v120, v3\ns_nop 1\nv_permlane16_swap_b32 v3, v120\nv_max_f32 v3, v3, v120")
    A("v_mov_b32 v120, v3\ns_nop 1\nv_permlane32_swap_b32 v3, v120\nv_max_f32 v3, v3, v120")
    A("v_mul_f32 v3, s31, v3")
    A("v_max_f32 v3, v3, v1")
    A("v_sub_f32 v121, v1, v3")
    A("v_mov_b32 v1, v3")
    A("v_exp_f32 v121, v121")
    for k in range(8): A("v_fma_f32 v%d, v%d, s31, -v3" % (S + k, S + k))
    for k in range(8): A("v_exp_f32 v%d, v%d" % (S + k, S + k))
    A("v_mul_f32 v2, v2, v121")
    for k in range(16): A("v_mul_f32 v%d, v%d, v121" % (O + k, O + k))
    for k in range(8): A("v_add_f32 v2, v2, v%d" % (S + k))
    for k in range(4): A("v_cvt_pk_bf16_f32 v%d, v%d, v%d" % (P + k, S + 2 * k, S + 2 * k + 1))
    if skip:
        def younger(r):
            nv = min(RV - 1, r - 1)
            nk = max(0, min(RK, r - 1) - lead)
            return 4 * nv + 8 * nk
        full = (RV - 1) * 12 + 8
        assert younger(RK + 1) == full
        A("s_cmp_gt_u32 s38, %d\ns_cbranch_scc1 L_wfull" % RK)
        for r in range(RK, 0, -1):
            if r > 1:
                A("s_cmp_lg_u32 s38, %d\ns_cbranch_scc1 L_w%d" % (r, r - 1))
            A("s_waitcnt vmcnt(%d)\ns_branch L_wdone" % younger(r))
            if r > 1: A("L_w%d:" % (r - 1))
        A("L_wfull:\ns_waitcnt vmcnt(%d)\nL_wdone:" % full)
    else:
        A("s_waitcnt vmcnt(%d)" % ((RV - 1) * 12 + 8))
    ST(4)
    for e in range(4):
        for tt in range(2):
            r = VF + 4 * e + 2 * tt
            A("ds_read_b64_tr_b16 v[%d:%d], v%d offset:%d" % (r, r + 1, 116 + e, tt * 2048))
    A("s_add_u32 m0, s39, s37\ns_add_u32 m0, m0, %d" % (RK * 8192))
    A("s_add_u32 s37, s37, 4096\ns_cmp_eq_u32 s37, %d\ns_cselect_b32 s37, 0, s37" % (RV * 4096))
    for e in range(4):
        A("s_waitcnt lgkmcnt(%d)" % (6 - 2 * e))
        A("v_mfma_f32_16x16x32_bf16 v[%d:%d], v[%d:%d], v[%d:%d], v[%d:%d]" % (O + 4 * e, O + 4 * e + 3, VF + 4 * e, VF + 4 * e + 3, P, P + 3, O + 4 * e, O + 4 * e + 3))
    if skip:
        A("s_cmp_le_u32 s38, %d\ns_cbranch_scc1 L_nov" % RV)
        vload()
        A("L_nov:")
    else:
        vload()
    if stamp:
        A("s_cmp_eq_u32 s38, %d\ns_cbranch_scc0 L_ns3" % NSTEP)
        ST(3)
        A("L_ns3:")
    A("s_sub_u32 s38, s38, 1\ns_cmp_lg_u32 s38, 0\ns_cbranch_scc1 L_loop")
    A("L_epi:")
    ST(5)
    A("v_mov_b32 v120, v2\ns_nop 1\nv_permlane16_swap_b32 v2, v120\nv_add_f32 v2, v2, v120")
    A("v_mov_b32 v120, v2\ns_nop 1\nv_permlane32_swap_b32 v2, v120\nv_add_f32 v3, v2, v120")
    A("v_mov_b32 v2, v1")
    A("ds_write_b64 v123, v[2:3] offset:4096")
    for e in range(4):
        A("ds_write_b128 v122, v[%d:%d] offset:%d" % (O + 4 * e, O + 4 * e + 3, e * 1024))
    A("s_waitcnt lgkmcnt(0)")
    A("s_barrier")
    ST(6)
    NE = max(1, 4 // W)
    nb = 4 * NE if W <= 4 else 2
    E = 32
    for w in range(W):
        A("ds_read_b64 v[%d:%d], v125 offset:%d" % (E + 2 * w, E + 1 + 2 * w, w * IW))
    F = 64
    for w in range(W):
        if W <= 4:
            for ee in range(NE): A("ds_read_b128 v[%d:%d], v124 offset:%d" % (F + nb * w + 4 * ee, F + nb * w + 4 * ee + 3, w * IW + ee * 1024))
        else: A("ds_read_b64 v[%d:%d], v124 offset:%d" % (F + 2 * w, F + 1 + 2 * w, w * IW))
    A("s_waitcnt lgkmcnt(%d)" % (W * NE))
    if W == 2: A("v_max_f32 v1, v%d, v%d" % (E, E + 2))
    else:
        A("v_max3_f32 v1, v%d, v%d, v%d" % (E, E + 2, E + 4))
        for w in range(3, W - 1, 2): A("v_max3_f32 v1, v1, v%d, v%d" % (E + 2 * w, E + 2 + 2 * w))
        A("v_max_f32 v1, v1, v%d" % (E + 2 * (W - 1)))
    for w in range(W): A("v_sub_f32 v%d, v%d, v1" % (E + 2 * w, E + 2 * w))
    for w in range(W): A("v_exp_f32 v%d, v%d" % (E + 2 * w, E + 2 * w))
    A("s_nop 0")
    A("v_mul_f32 v2, v%d, v%d" % (E, E + 1))
    for w in range(1, W): A("v_fmac_f32 v2, v%d, v%d" % (E + 2 * w, E + 1 + 2 * w))
    A("v_rcp_f32 v2, v2")
    A("s_waitcnt lgkmcnt(0)")
    G = 48
    for k in range(nb): A("v_mul_f32 v%d, v%d, v%d" % (G + k, E, F + k))
    for w in range(1, W):
        for k in range(nb): A("v_fmac_f32 v%d, v%d, v%d" % (G + k, E + 2 * w, F + nb * w + k))
    for k in range(nb): A("v_mul_f32 v%d, v%d, v2" % (G + k, G + k))
    for k in range(nb // 2): A("v_cvt_pk_bf16_f32 v%d, v%d, v%d" % (G + k, G + 2 * k, G + 2 * k + 1))
    if dry:
        A("s_cmp_lg_u32 s38, 0\ns_cbranch_scc1 L_back")
    if W <= 4:
        for ee in range(NE): A("buffer_store_dwordx2 v[%d:%d], v126, s[24:27], s47 offen offset:%d" % (G + 2 * ee, G + 2 * ee + 1, 32 * ee))
    else: A("buffer_store_dword v%d, v126, s[24:27], s47 offen" % G)
    if stamp:
        ST(7)
        A("s_waitcnt vmcnt(0)")
        ST(8)
        A("s_getreg_b32 s50, hwreg(HW_REG_XCC_ID)")
        A("s_getreg_b32 s51, hwreg(HW_REG_HW_ID)")
        A("s_and_b32 s50, s50, 15\ns_or_b32 s50, s50, 0xabcd00")
        A("s_add_u32 s40, s40, 0x8000000\ns_addc_u32 s41, s41, 0")
        A("s_lshl_b32 s34, s2, %d\ns_add_u32 s34, s34, s3\ns_lshl_b32 s34, s34, 6" % lw)
        A("v_mov_b32 v8, s50\nv_mov_b32 v9, s51")
        for k in range(14): A("v_mov_b32 v%d, s%d" % (10 + k, 60 + 2 * k))
        A("v_mov_b32 v7, s34")
        A("v_cmp_eq_u32 vcc, 0, v5")
        A("s_and_saveexec_b64 s[52:53], vcc")
        for k in range(4): A("global_store_dwordx4 v7, v[%d:%d], s[40:41] offset:%d" % (8 + 4 * k, 11 + 4 * k, 16 * k))
    A("L_end:\ns_endpgm")
    A('.section .rodata,"a"\n.p2align 6\n.amdhsa_kernel %s' % KN)
    A("  .amdhsa_next_free_vgpr 128\n  .amdhsa_next_free_sgpr 96\n  .amdhsa_accum_offset 128")
    A("  .amdhsa_group_segment_fixed_size 0\n  .amdhsa_kernarg_size 48\n  .amdhsa_user_sgpr_count 2")
    A("  .amdhsa_user_sgpr_kernarg_segment_ptr 1\n  .amdhsa_system_sgpr_workgroup_id_x 1\n.end_amdhsa_kernel")
    open(path, "w").write("\n".join(L) + "\n")

if __name__ == "__main__":
    import mk
    names = []
    def G(n, **k):
        gen(n + ".s", **k); names.append(n)
    G("v3_k2v2", RK=2, RV=2)
    G("v3_w2k3v2", W=2, RK=3, RV=2)
    G("v3_w2k3v3", W=2, RK=3, RV=3)
    G("v3_w2k2v2", W=2, RK=2, RV=2)
    G("v3_w2k3v2adj", W=2, RK=3, RV=2, adj=True)
    G("v3_w2k5v4", W=2, RK=5, RV=4)
    G("v3_w2k3v2_st", W=2, RK=3, RV=2, stamp=True)
    names += ["s3_k2_l4t2_kdef", "s2_l256x8d16c4", "s3_a960_l4t1_p1"]
    mk.finish(names, ["dev/an16.py"])
```

```python
import sys, struct
KN = "standalone__gqa_softmax__sampling_kernel"
HDR = open("standalone__gqa_softmax__sampling.s.ref").read().split("; Override")[0]
def f2u(x): return struct.unpack("<I", struct.pack("<f", x))[0]
CSC = f2u(128 ** -0.5 * 1.4426950408889634)

def gen(path, win=36, lead=4, NK=12, NV=8, kpol="nt", vpol="nt", stamp=False, sleep=1, prio=3, dbg="", n1=None, tailpat="k", dry=False):
    L = []; A = L.append
    C = 4
    NS = 64
    assert NK >= NV + lead - 4 and NK > lead and NV >= 8 and lead >= 1
    KR = 0; VR = NK * 8192; INB = VR + NV * 4096
    PB = INB + 16384
    STAT = PB + 8192; FL = STAT + 1024
    EV = NS - 2 * C
    LDS = FL + 1536
    assert LDS <= 163840
    DONE = FL; LK = FL + 1024; LV = FL + 1280
    def ST(k):
        if stamp: A("s_memrealtime s[%d:%d]\ns_waitcnt lgkmcnt(0)" % (60 + 2 * k, 61 + 2 * k))
    A(HDR.rstrip())
    A("; @launch grid=(256,1,1) block=(320,1,1) lds=%d" % LDS)
    A('.amdgcn_target "amdgcn-amd-amdhsa--gfx950"')
    A(".text\n.globl %s\n.p2align 8\n.type %s,@function\n%s:" % (KN, KN, KN))
    A("s_load_dwordx8 s[4:11], s[0:1], 0")
    if stamp:
        A("s_memrealtime s[60:61]")
        A("s_load_dwordx2 s[40:41], s[0:1], 40")
    A("v_readfirstlane_b32 s3, v0")
    A("s_cmpk_ge_u32 s2, 0x100")
    A("s_cbranch_scc1 L_end")
    A("s_lshr_b32 s28, s2, 4\ns_and_b32 s29, s2, 7\ns_lshl3_add_u32 s28, s28, s29")
    A("s_cmp_ge_u32 s3, 64")
    A("s_cbranch_scc1 L_cons")
    A("v_and_b32 v6, 15, v0")
    A("v_lshrrev_b32 v7, 4, v0")
    A("v_xor_b32 v8, v6, v7")
    A("v_lshlrev_b32 v8, 4, v8")
    A("v_lshl_add_u32 v8, v7, 8, v8")
    A("v_xor_b32 v9, 64, v8\nv_xor_b32 v10, 0x80, v8\nv_xor_b32 v11, 0xc0, v8")
    A("s_lshl_b32 s29, s28, 19\ns_lshl_b32 s28, s28, 12")
    A("s_mov_b32 s18, 0x80000\ns_mov_b32 s19, 0x20000\ns_mov_b32 s14, s18\ns_mov_b32 s15, 0x20000")
    A("s_mov_b32 s34, 0\ns_mov_b32 m0, %d" % INB)
    A("s_waitcnt lgkmcnt(0)")
    A("s_mov_b32 s12, s4\ns_mov_b32 s13, s5")
    for i in range(4):
        if "noq" not in dbg: A("buffer_load_dwordx4 v%d, s[12:15], s28 offen offset:%d lds" % (8 + i, i * 1024))
    A("s_mov_b32 m0, 0")
    A("s_add_u32 s16, s6, s29\ns_addc_u32 s17, s7, 0")
    A("L_p0:")
    if 8 * lead + 4 > win: A("s_waitcnt vmcnt(%d)" % (win - 4))
    for i in range(4): A("buffer_load_dwordx4 v%d, s[16:19], s34 offen offset:%d %s lds" % (8 + i, i * 1024, kpol))
    A("s_addk_i32 s34, 0x1000\ns_mov_b32 m0, s34\ns_cmp_lt_u32 s34, %d\ns_cbranch_scc1 L_p0" % (lead * 8192))
    if stamp:
        for k in range(1, 14): A("s_mov_b32 s%d, 0" % (60 + 2 * k))
    ST(11)
    A("s_setprio %d" % prio)
    A("s_bfe_u32 s30, s2, 0x10003")
    A("s_add_u32 s20, s8, s29\ns_addc_u32 s21, s9, 0\ns_mov_b32 s22, 0x80000\ns_mov_b32 s23, 0x20000")
    A("v_lshrrev_b32 v2, 3, v0")
    A("v_and_b32 v3, 6, v2")
    A("v_and_b32 v4, 7, v0")
    A("v_xor_b32 v4, v4, v3")
    A("v_lshlrev_b32 v4, 4, v4")
    A("v_lshl_add_u32 v4, v2, 8, v4")
    A("s_lshl_b32 s44, s30, 7")
    A("v_add_u32 v12, s44, v4")
    A("v_add_u32 v13, 0x400, v12\nv_add_u32 v14, 0x800, v12\nv_add_u32 v15, 0xc00, v12")
    A("v_mov_b32 v20, 0\nv_mov_b32 v21, 0\nv_mov_b32 v22, 0\nv_mov_b32 v23, 0")
    A("v_lshlrev_b32 v16, 4, v0\nv_add_u32 v16, %d, v16\nds_write_b128 v16, v[20:23]" % DONE)
    A("v_lshlrev_b32 v16, 2, v0\nv_add_u32 v16, %d, v16" % LK)
    A("ds_write_b32 v16, v20\nds_write_b32 v16, v20 offset:256")
    A("v_and_b32 v17, 3, v0\nv_lshlrev_b32 v17, 8, v17\nv_add_u32 v17, %d, v17" % DONE)
    A("s_mov_b32 s35, 0\ns_mov_b32 s36, s34\ns_mov_b32 s37, %d" % VR)
    A("s_mov_b32 s38, 0")
    A("v_mov_b32 v18, 0")
    A("s_waitcnt lgkmcnt(0)")
    A("s_barrier")
    def wait_pub(pos, hooks):
        A("s_waitcnt vmcnt(%d)" % (win - 1))
        if pos in hooks: hooks[pos]()
    def kunit(hooks, base=0):
        for i in range(4):
            wait_pub(base + i, hooks)
            A("buffer_load_dwordx4 v%d, s[16:19], s34 offen offset:%d %s lds" % (8 + i, i * 1024, kpol))
        A("s_add_u32 m0, m0, 4096")
        A("s_add_u32 s44, s34, 4096")
        for i in range(4):
            wait_pub(base + 4 + i, hooks)
            A("buffer_load_dwordx4 v%d, s[16:19], s44 offen offset:%d %s lds" % (8 + i, i * 1024, kpol))
        A("s_add_u32 s34, s34, 8192")
        A("s_add_u32 s36, s36, 8192\ns_cmp_eq_u32 s36, %d\ns_cselect_b32 s36, %d, s36" % (KR + NK * 8192, KR))
    def vunit(hooks, base=8):
        A("s_mov_b32 m0, s37")
        A("s_add_u32 s37, s37, 4096\ns_cmp_eq_u32 s37, %d\ns_cselect_b32 s37, %d, s37" % (VR + NV * 4096, VR))
        for i in range(4):
            wait_pub(base + i, hooks)
            A("buffer_load_dwordx4 v%d, s[20:23], s35 offen offset:%d %s lds" % (12 + i, i * 1024, vpol))
        A("s_add_u32 s35, s35, 8192")
    dK, pK = divmod(7 + win, 12)
    dV, pV = divmod(11 + win, 12)
    def firstK(i):
        nl = 8 * lead + 12 * i + pK - win + 1
        return max(0, min(nl, 8 * lead) // 8)
    A(".p2align 3\nL_ploop:")
    def freecheck(tag, pending):
        if "nofree" in dbg: return
        A("s_sub_u32 s39, s38, %d" % NV)
        A("s_and_b32 s45, s39, 3")
        A("s_waitcnt lgkmcnt(%d)" % pending)
        A("L_fc%s:" % tag)
        A("v_readlane_b32 s46, v18, s45")
        A("ds_read_b32 v18, v17")
        A("s_cmp_gt_i32 s46, s39")
        A("s_cbranch_scc1 L_fd%s" % tag)
        A("s_waitcnt lgkmcnt(0)")
        A("s_branch L_fc%s" % tag)
        A("L_fd%s:" % tag)
    freecheck("a", 2)
    def pubK():
        if "nopub" in dbg: return
        A("s_add_u32 s45, s38, %d" % (lead + 1 - dK))
        for i in range(dK):
            if firstK(i) != i + lead + 1 - dK:
                A("s_cmp_eq_u32 s38, %d\ns_cselect_b32 s45, %d, s45" % (i, firstK(i)))
        A("v_mov_b32 v19, s45\nds_write_b32 v16, v19")
    def pubV():
        if "nopub" in dbg: return
        A("s_add_u32 s45, s38, %d\ns_max_i32 s45, s45, 0" % (1 - dV))
        A("v_mov_b32 v20, s45\nds_write_b32 v16, v20 offset:256")
    hooks = {}
    if pK == pV: hooks[pK] = lambda: (pubK(), pubV())
    else: hooks[pK] = pubK; hooks[pV] = pubV
    kunit(hooks)
    vunit(hooks)
    A("s_mov_b32 m0, s36")
    if n1 is None: n1 = NS - lead
    A("s_add_u32 s38, s38, 1\ns_cmp_lt_u32 s38, %d\ns_cbranch_scc1 L_ploop" % n1)
    seq = []
    for u in range(lead): seq += [("K", u)] * 8
    for i in range(n1): seq += [("K", i + lead)] * 8 + [("V", i)] * 4
    nloop = len(seq)
    restK = list(range(n1 + lead, NS)); restV = list(range(n1, NS))
    tail = []
    if tailpat == "k":
        tail = [("K", u) for u in restK] + [("V", u) for u in restV]
    else:
        while restK:
            tail += [("K", u) for u in restK[:2]]; restK = restK[2:]
            if restK: tail.append(("V", restV.pop(0)))
        tail += [("V", u) for u in restV]
    for kind, u in tail: seq += [(kind, u)] * (8 if kind == "K" else 4)
    total = len(seq)
    def landed(nl):
        k = v = 0
        for idx in range(nl):
            kind, u = seq[idx]
            if idx + 1 == total or seq[idx + 1] != seq[idx]:
                if kind == "K": k = u + 1
                else: v = u + 1
        return k, v
    i_last = n1 - 1
    cur = {"K": i_last + lead + 1 - dK, "V": i_last + 1 - dV}
    def pub_const(nl):
        k, v = landed(nl)
        v = min(v, EV)
        if k > cur["K"]:
            A("v_mov_b32 v19, %d\nds_write_b32 v16, v19" % k); cur["K"] = k
        if v > cur["V"]:
            A("v_mov_b32 v20, %d\nds_write_b32 v16, v20 offset:256" % v); cur["V"] = v
    n = nloop
    assert NV >= dV + 1 and lead - dK + NV >= 5 and NV > dK
    ver = i_last - NV
    for kind, u in tail:
        need = u - NV if kind == "V" else u - NK - C
        while ver < need:
            ver += 1
            assert ver < EV and cur["V"] >= ver + 1 and cur["K"] >= ver + 5, ("deadlock", kind, u, dict(cur))
            A("s_mov_b32 s38, %d" % (ver + NV))
            freecheck("t%d" % ver, 0)
        cnt = 8 if kind == "K" else 4
        hk = {}
        for p in range(cnt):
            hk[p] = (lambda q: (lambda: pub_const(q - win + 1)))(n + p)
        if kind == "K":
            A("s_mov_b32 m0, s36")
            kunit(hk, 0)
        else: vunit(hk, 0)
        n += cnt
    ST(1)
    x = win - 1
    while cur["K"] < NS or cur["V"] < EV:
        nl = total - x
        k, v = landed(nl); v = min(v, EV)
        if k > cur["K"] or v > cur["V"]:
            A("s_waitcnt vmcnt(%d)" % x)
            pub_const(nl)
        x -= 1
    ST(2)
    yb1 = total - 1 - max(idx for idx in range(total) if seq[idx] == ("V", EV + C - 1))
    A("s_waitcnt vmcnt(%d) lgkmcnt(0)" % yb1)
    ST(5)
    A("s_barrier")
    ST(3)
    A("s_waitcnt vmcnt(0)")
    ST(4)
    A("s_barrier")
    if stamp: A("s_mov_b32 s3, 0\nv_mov_b32 v5, v0\ns_branch L_stamp")
    A("s_endpgm")
    Q = 16; KF = 32; S = 64; P = 72; VF = 76; O = 92; VA = 108; SP = 128
    A("L_cons:")
    A("s_barrier")
    if "idle" in dbg: A("s_barrier\ns_barrier\ns_endpgm")
    A("s_lshr_b32 s3, s3, 6\ns_sub_u32 s3, s3, 1")
    A("s_bfe_u32 s30, s2, 0x10003")
    A("v_and_b32 v5, 63, v0")
    A("v_and_b32 v6, 15, v5")
    A("v_lshrrev_b32 v7, 4, v5")
    A("s_lshl_b32 s28, s28, 12")
    A("s_mov_b32 s26, 0x80000\ns_mov_b32 s27, 0x20000")
    A("s_mov_b32 s31, 0x%x" % CSC)
    A("v_xor_b32 v12, v6, v7\nv_lshlrev_b32 v12, 4, v12\nv_lshl_add_u32 v12, v6, 8, v12")
    A("v_xor_b32 v13, 64, v12\nv_xor_b32 v14, 0x80, v12\nv_xor_b32 v15, 0xc0, v12")
    A("s_lshl_b32 s44, s3, 8\ns_add_u32 s44, s44, %d" % DONE)
    A("v_lshl_add_u32 v127, v5, 2, s44")
    A("s_waitcnt lgkmcnt(0)")
    if stamp:
        for k in range(1, 14): A("s_mov_b32 s%d, 0" % (60 + 2 * k))
    A("s_mov_b32 s24, s10\ns_mov_b32 s25, s11")
    A("v_lshrrev_b32 v2, 2, v5")
    A("v_and_b32 v4, 6, v2")
    A("v_bfe_u32 v1, v5, 1, 1")
    A("v_xor_b32 v4, v4, v1")
    A("v_lshlrev_b32 v4, 4, v4")
    A("v_lshl_add_u32 v4, v2, 7, v4")
    A("v_and_b32 v1, 1, v5")
    A("v_lshl_add_u32 v4, v1, 3, v4")
    A("s_lshl_b32 s44, s3, 5")
    A("v_xor_b32 v4, s44, v4")
    A("v_add_u32 v%d, %d, v4" % (VA, VR))
    for e in range(1, 4): A("v_xor_b32 v%d, %d, v%d" % (VA + e, 32 * e, VA))
    A("v_lshlrev_b32 v8, 4, v5")
    A("s_lshl_b32 s45, s3, 10")
    for i in range(4):
        A("s_xor_b32 s44, s3, %d\ns_lshl_b32 s44, s44, 12\ns_add_u32 s44, s44, s45\ns_add_u32 s44, s44, %d" % (i, INB))
        A("v_add_u32 v%d, s44, v8" % (122 + i))
    A("s_lshl_b32 s44, s3, 11\ns_add_u32 s44, s44, %d\nv_add_u32 v9, s44, v8" % PB)
    A("v_add_u32 v10, %d, v8" % PB)
    A("s_lshl_b32 s44, s3, 12\ns_add_u32 s44, s44, %d\nv_add_u32 v8, s44, v8" % INB)
    A("v_lshlrev_b32 v11, 4, v6\nv_add_u32 v11, %d, v11" % STAT)
    A("s_lshl_b32 s44, s3, 8\nv_add_u32 v128, s44, v11")
    A("v_lshlrev_b32 v126, 8, v6")
    A("v_lshl_add_u32 v126, v7, 3, v126")
    A("s_lshl_b32 s47, s3, 5\ns_lshl_b32 s45, s30, 7\ns_add_u32 s47, s47, s45\ns_add_u32 s47, s47, s28")
    A("v_mov_b32 v4, %d" % LK)
    if dry:
        A("s_mov_b64 vcc, -1\ns_mov_b64 exec, 0\ns_branch L_post\nL_dryback:\ns_mov_b64 exec, -1\ns_mov_b64 vcc, 0\ns_nop 7")
    for k in range(16): A("v_mov_b32 v%d, 0" % (O + k))
    A("v_mov_b32 v1, 0xff800000")
    A("v_mov_b32 v2, 0")
    A("s_lshl_b32 s36, s3, 13\ns_lshl_b32 s37, s3, 12")
    A("s_mov_b32 s38, s3")
    A("s_mov_b32 s42, 0\ns_mov_b32 s43, 0")
    A("v_mov_b32 v121, 0")
    for j in range(4): A("v_add_u32 v%d, %d, v%d" % (112 + j, INB, 12 + j))
    ST(2)
    A("L_pq0:")
    if sleep: A("s_sleep %d" % sleep)
    A("ds_read_b32 v3, v4\ns_waitcnt lgkmcnt(0)\nv_readfirstlane_b32 s42, v3")
    A("s_cmp_gt_u32 s42, 0\ns_cbranch_scc0 L_pq0")
    for j in range(4): A("ds_read_b128 v[%d:%d], v%d" % (Q + 4 * j, Q + 4 * j + 3, 112 + j))
    PN = 8
    A(".p2align 3\nL_cloop:")
    for j in range(4): A("v_add_u32 v%d, s36, v%d" % (112 + j, 12 + j))
    A("s_branch L_pk1")
    A("L_pk0:")
    if sleep: A("s_sleep %d" % sleep)
    A("ds_read_b32 v3, v4\ns_waitcnt lgkmcnt(0)\nv_readfirstlane_b32 s42, v3")
    A("L_pk1:\ns_cmp_gt_u32 s42, s38\ns_cbranch_scc0 L_pk0")
    for tt in range(2):
        for j in range(4):
            r = KF + 16 * tt + 4 * j
            A("ds_read_b128 v[%d:%d], v%d offset:%d" % (r, r + 3, 112 + j, tt * 4096))
    for k in range(16): A("v_mul_f32 v%d, v%d, v121" % (O + k, O + k))
    for e in range(4): A("v_add_u32 v%d, s37, v%d" % (116 + e, VA + e))
    A("s_add_u32 s36, s36, %d\ns_cmp_ge_u32 s36, %d\ns_cselect_b32 s44, %d, 0\ns_sub_u32 s36, s36, s44" % (C * 8192, NK * 8192, NK * 8192))
    for tt in range(2):
        for j in range(4):
            r = KF + 16 * tt + 4 * j
            A("s_waitcnt lgkmcnt(%d)" % (7 - 4 * tt - j))
            c = "0" if j == 0 else "v[%d:%d]" % (S + 4 * tt, S + 4 * tt + 3)
            A("v_mfma_f32_16x16x32_bf16 v[%d:%d], v[%d:%d], v[%d:%d], %s" % (S + 4 * tt, S + 4 * tt + 3, r, r + 3, Q + 4 * j, Q + 4 * j + 3, c))
    A("s_nop 3")
    A("v_max3_f32 v3, v%d, v%d, v%d" % (S, S + 1, S + 2))
    A("v_max_f32 v3, v3, v%d" % (S + 3))
    A("s_nop 1")
    A("v_max3_f32 v3, v3, v%d, v%d" % (S + 4, S + 5))
    A("v_max3_f32 v3, v3, v%d, v%d" % (S + 6, S + 7))
    A("v_mov_b32 v120, v3\ns_nop 1\nv_permlane16_swap_b32 v3, v120\nv_max_f32 v3, v3, v120")
    A("v_mov_b32 v120, v3\ns_nop 1\nv_permlane32_swap_b32 v3, v120\nv_max_f32 v3, v3, v120")
    A("v_mul_f32 v3, s31, v3")
    A("v_max_f32 v3, v3, v1")
    A("v_sub_f32 v121, v1, v3")
    A("v_mov_b32 v1, v3")
    A("v_exp_f32 v121, v121")
    for k in range(8): A("v_fma_f32 v%d, v%d, s31, -v3" % (S + k, S + k))
    for k in range(8): A("v_exp_f32 v%d, v%d" % (S + k, S + k))
    A("s_cmp_ge_u32 s38, %d\ns_cbranch_scc1 L_last" % (NS - C))
    A("v_mul_f32 v2, v2, v121")
    for k in range(8): A("v_add_f32 v2, v2, v%d" % (S + k))
    A("s_sub_u32 s39, s38, %d" % C)
    A("s_cbranch_scc1 L_nopv")
    A("s_branch L_pv1")
    A("L_pv0:")
    if sleep: A("s_sleep %d" % sleep)
    A("ds_read_b32 v3, v4 offset:256\ns_waitcnt lgkmcnt(0)\nv_readfirstlane_b32 s43, v3")
    A("L_pv1:\ns_cmp_gt_u32 s43, s39\ns_cbranch_scc0 L_pv0")
    for e in range(4):
        for tt in range(2):
            r = VF + 4 * e + 2 * tt
            A("ds_read_b64_tr_b16 v[%d:%d], v%d offset:%d" % (r, r + 1, 116 + e, tt * 2048))
    A("s_add_u32 s39, s39, 1")
    A("v_mov_b32 v3, s39")
    A("s_add_u32 s37, s37, %d\ns_cmp_ge_u32 s37, %d\ns_cselect_b32 s44, %d, 0\ns_sub_u32 s37, s37, s44" % (C * 4096, NV * 4096, NV * 4096))
    for e in (1, 2, 3, 0):
        pass
    for e in range(4):
        A("s_waitcnt lgkmcnt(%d)" % (6 - 2 * e))
        A("v_mfma_f32_16x16x32_bf16 v[%d:%d], v[%d:%d], v[%d:%d], v[%d:%d]" % (O + 4 * e, O + 4 * e + 3, VF + 4 * e, VF + 4 * e + 3, P, P + 3, O + 4 * e, O + 4 * e + 3))
    A("ds_write_b32 v127, v3")
    A("L_nopv:")
    for k in range(4): A("v_cvt_pk_bf16_f32 v%d, v%d, v%d" % (P + k, S + 2 * k, S + 2 * k + 1))
    A("s_add_u32 s38, s38, %d" % C)
    A("s_cmp_lt_u32 s38, %d\ns_cbranch_scc1 L_cloop" % (NS - C))
    A("L_post:")
    A("ds_write_b128 v9, v[%d:%d]" % (P, P + 3))
    A("ds_write_b32 v128, v1")
    for i in range(4):
        for k in range(4): A("v_mul_f32 v%d, v%d, v121" % (O + 4 * i + k, O + 4 * i + k))
        A("ds_write_b128 v%d, v[%d:%d]" % (122 + i, O + 4 * i, O + 4 * i + 3))
    A("s_cbranch_vccz L_cloop" if dry else "s_branch L_cloop")
    A("L_last:")
    for k in range(4): A("v_cvt_pk_bf16_f32 v%d, v%d, v%d" % (P + k, S + 2 * k, S + 2 * k + 1))
    A("ds_write_b32 v128, v1 offset:4")
    A("ds_write_b128 v9, v[%d:%d] offset:1024" % (P, P + 3))
    A("s_waitcnt lgkmcnt(0)")
    ST(3)
    if dry: A("s_cbranch_vccnz L_skA")
    A("s_barrier")
    if dry: A("L_skA:")
    E = 136; PX = 32; LL = 144; OB = 148
    def rd(h, i):
        slot = (EV + 4 * h + i) % NV
        for tt in range(2):
            r = VF + 4 * i + 2 * tt
            A("ds_read_b64_tr_b16 v[%d:%d], v%d offset:%d" % (r, r + 1, VA, slot * 4096 + tt * 2048))
    for i in range(4): A("ds_read_b64 v[%d:%d], v11 offset:%d" % (E + 2 * i, E + 2 * i + 1, i * 256))
    def grp(i):
        A("ds_read_b128 v[%d:%d], v8 offset:%d" % (O + 4 * i, O + 4 * i + 3, i * 1024))
        A("ds_read_b128 v[%d:%d], v10 offset:%d" % (PX + 4 * i, PX + 4 * i + 3, i * 2048))
        rd(0, i)
    def mfa(i): A("v_mfma_f32_16x16x32_bf16 v[%d:%d], v[%d:%d], v[%d:%d], v[%d:%d]" % (O + 4 * i, O + 4 * i + 3, VF + 4 * i, VF + 4 * i + 3, PX + 4 * i, PX + 4 * i + 3, O + 4 * i, O + 4 * i + 3))
    grp(0); grp(1)
    A("v_mul_f32 v2, v2, v121")
    for k in range(0, 8, 2): A("v_add_f32 v%d, v%d, v%d" % (S + k, S + k, S + k + 1))
    A("v_add_f32 v%d, v%d, v%d\nv_add_f32 v%d, v%d, v%d" % (S, S, S + 2, S + 4, S + 4, S + 6))
    A("v_add_f32 v2, v2, v%d\nv_add_f32 v2, v2, v%d" % (S, S + 4))
    A("s_waitcnt lgkmcnt(8)")
    grp(2)
    A("v_mov_b32 v120, v2")
    A("v_max3_f32 v1, v%d, v%d, v%d" % (E + 1, E + 3, E + 5))
    A("v_max_f32 v1, v1, v%d" % (E + 7))
    A("v_permlane16_swap_b32 v2, v120\nv_add_f32 v2, v2, v120")
    A("s_waitcnt lgkmcnt(8)"); mfa(0)
    grp(3)
    A("v_mov_b32 v120, v2")
    for k in range(4): A("v_sub_f32 v%d, v%d, v1" % (E + k, E + k))
    A("v_permlane32_swap_b32 v2, v120\nv_add_f32 v2, v2, v120")
    A("s_waitcnt lgkmcnt(8)"); mfa(1)
    A("ds_write_b32 v128, v2 offset:8")
    for k in range(4, 8): A("v_sub_f32 v%d, v%d, v1" % (E + k, E + k))
    for k in range(4): A("v_exp_f32 v%d, v%d" % (E + k, E + k))
    A("s_waitcnt lgkmcnt(5)"); mfa(2)
    for i in range(4): A("ds_read_b128 v[%d:%d], v10 offset:%d" % (PX + 16 + 4 * i, PX + 16 + 4 * i + 3, i * 2048 + 1024))
    for k in range(4, 8): A("v_exp_f32 v%d, v%d" % (E + k, E + k))
    A("s_waitcnt lgkmcnt(5)"); mfa(3)
    for k in range(4): A("v_mul_f32 v%d, v%d, v%d" % (O + k, O + k, E))
    for i in range(1, 4):
        for k in range(4): A("v_fmac_f32 v%d, v%d, v%d" % (O + k, E + 2 * i, O + 4 * i + k))
    A("s_waitcnt lgkmcnt(0)")
    ST(4)
    if dry: A("s_cbranch_vccnz L_skB2")
    A("s_barrier")
    if dry: A("L_skB2:")
    ST(5)
    rd(1, 0)
    for i in range(4): A("ds_read_b32 v%d, v11 offset:%d" % (LL + i, i * 256 + 8))
    for i in range(1, 4): rd(1, i)
    def mfb(i):
        p = PX + 16 + 4 * i
        A("v_mfma_f32_16x16x32_bf16 v[%d:%d], v[%d:%d], v[%d:%d], 0" % (OB + 4 * i, OB + 4 * i + 3, VF + 4 * i, VF + 4 * i + 3, p, p + 3))
    A("s_waitcnt lgkmcnt(10)"); mfb(0)
    A("s_waitcnt lgkmcnt(4)"); mfb(1)
    A("v_mul_f32 v2, v%d, v%d" % (E + 1, LL))
    A("v_fmac_f32 v2, v%d, v%d" % (E + 3, LL + 1))
    A("s_waitcnt lgkmcnt(2)"); mfb(2)
    A("v_fmac_f32 v2, v%d, v%d" % (E + 5, LL + 2))
    A("v_fmac_f32 v2, v%d, v%d" % (E + 7, LL + 3))
    A("s_waitcnt lgkmcnt(0)"); mfb(3)
    A("v_rcp_f32 v2, v2")
    for i in range(4):
        for k in range(4): A("v_fmac_f32 v%d, v%d, v%d" % (O + k, E + 2 * i + 1, OB + 4 * i + k))
    for k in range(4): A("v_mul_f32 v%d, v%d, v2" % (O + k, O + k))
    A("v_cvt_pk_bf16_f32 v%d, v%d, v%d" % (O, O, O + 1))
    A("v_cvt_pk_bf16_f32 v%d, v%d, v%d" % (O + 1, O + 2, O + 3))
    if dry: A("s_cbranch_vccnz L_dryback")
    A("buffer_store_dwordx2 v[%d:%d], v126, s[24:27], s47 offen" % (O, O + 1))
    if stamp:
        ST(7)
        A("s_waitcnt vmcnt(0)")
        ST(8)
        A("s_add_u32 s3, s3, 1")
        A("L_stamp:")
        A("s_getreg_b32 s50, hwreg(HW_REG_XCC_ID)")
        A("s_getreg_b32 s51, hwreg(HW_REG_HW_ID)")
        A("s_and_b32 s50, s50, 15\ns_or_b32 s50, s50, 0xabcd00")
        A("s_add_u32 s40, s40, 0x8000000\ns_addc_u32 s41, s41, 0")
        A("s_lshl_b32 s34, s2, 3\ns_add_u32 s34, s34, s3\ns_lshl_b32 s34, s34, 6")
        A("v_mov_b32 v8, s50\nv_mov_b32 v9, s51")
        for k in range(14): A("v_mov_b32 v%d, s%d" % (10 + k, 60 + 2 * k))
        A("v_mov_b32 v7, s34")
        A("v_cmp_eq_u32 vcc, 0, v5")
        A("s_and_saveexec_b64 s[52:53], vcc")
        for k in range(4): A("global_store_dwordx4 v7, v[%d:%d], s[40:41] offset:%d" % (8 + 4 * k, 11 + 4 * k, 16 * k))
    A("L_end:\ns_endpgm")
    A('.section .rodata,"a"\n.p2align 6\n.amdhsa_kernel %s' % KN)
    A("  .amdhsa_next_free_vgpr 168\n  .amdhsa_next_free_sgpr 96\n  .amdhsa_accum_offset 168")
    A("  .amdhsa_group_segment_fixed_size 0\n  .amdhsa_kernarg_size 48\n  .amdhsa_user_sgpr_count 2")
    A("  .amdhsa_user_sgpr_kernarg_segment_ptr 1\n  .amdhsa_system_sgpr_workgroup_id_x 1\n.end_amdhsa_kernel")
    open(path, "w").write("\n".join(L) + "\n")

if __name__ == "__main__":
    import mk
    names = []
    def G(n, **k):
        gen(n + ".s", NV=9, sleep=0, **k); names.append(n)
    G("v10_l4n56", win=36, lead=4, n1=56)
    G("v10_l4n57", win=36, lead=4, n1=57)
    G("v10_l4", win=36, lead=4)
    G("v10_l3n56", win=36, lead=3, n1=56)
    G("v10_l4n56_w40", win=40, lead=4, n1=56)
    G("v10_l4n56_w32", win=32, lead=4, n1=56)
    G("v10_l4n56_st", win=36, lead=4, n1=56, stamp=True)
    G("v10_l4n56_idle", win=36, lead=4, n1=56, dbg="idle nofree")
    names += ["v9_l4n56", "s5_b_l4"]
    mk.finish(names, ["dev/an16r.py"])
```

```python
import sys, struct
KN = "standalone__gqa_softmax__sampling_kernel"
HDR = open("standalone__gqa_softmax__sampling.s.ref").read().split("; Override")[0]
def f2u(x): return struct.unpack("<I", struct.pack("<f", x))[0]
CSC = f2u(128 ** -0.5 * 1.4426950408889634)

DOC = """;
;
;
;"""

def gen(path, win=36, lead=4, NK=10, NV=12, n1=56, look=3, stamp=False):
    L = []
    def A(x, c=None):
        if c is None: L.append(x)
        else:
            ls = x.split("\n"); ls[0] = "%-64s ; %s" % (ls[0], c); L.append("\n".join(ls))
    def R(c): L.append("; " + c)
    C = 4; NS = 64
    BACK = min(NV, NK + C - lead)
    KR = 0; VR = NK * 8192; INB = VR + NV * 4096
    PB = INB + 16384; STAT = PB + 8192; FL = STAT + 1024
    EV = NS - 2 * C
    LDS = FL + 1536
    assert LDS <= 163840 and NK > lead and NV >= 8
    DONE = FL; LK = FL + 1024
    def ST(k):
        if stamp: A("s_memrealtime s[%d:%d]\ns_waitcnt lgkmcnt(0)" % (60 + 2 * k, 61 + 2 * k))
    A(HDR.rstrip())
    A("; @launch grid=(256,1,1) block=(320,1,1) lds=%d" % LDS)
    A(DOC)
    R("LDS map: K ring %d x 8 KiB at 0 | V ring %d x 4 KiB at %d | Q tile, later 4 inboxes x 4 KiB at %d | P fragments at %d |" % (NK, NV, VR, INB, PB))
    R("         statistics at %d | done words (4 x 256 B) at %d | landed K at %d, landed V at %d" % (STAT, DONE, LK, LK + 256))
    A('.amdgcn_target "amdgcn-amd-amdhsa--gfx950"')
    A(".text\n.globl %s\n.p2align 8\n.type %s,@function\n%s:" % (KN, KN, KN))
    A("s_load_dwordx8 s[4:11], s[0:1], 0", "q, k, v, out")
    if stamp:
        A("s_memrealtime s[60:61]")
        A("s_load_dwordx2 s[40:41], s[0:1], 40")
    A("v_readfirstlane_b32 s3, v0")
    A("s_cmpk_ge_u32 s2, 0x100", "extra workgroups leave")
    A("s_cbranch_scc1 L_end")
    A("s_lshr_b32 s28, s2, 4\ns_and_b32 s29, s2, 7\ns_lshl3_add_u32 s28, s28, s29", "s28 = group")
    A("s_cmp_ge_u32 s3, 64")
    A("s_cbranch_scc0 L_prod")
    R("consumers pull this kernel's code into L2 with one load (one dword per 128-byte line)")
    A("s_getpc_b64 s[48:49]\nL_pc:")
    A("v_subrev_u32 v1, 64, v0")
    A("v_lshlrev_b32 v1, 7, v1")
    A("v_min_u32 v1, L_end-L_pc, v1")
    A("global_load_dword v167, v1, s[48:49]")
    A("s_branch L_cons")
    R("=================================================== producer (wave 0, v0 = lane)")
    A("L_prod:")
    A("v_and_b32 v6, 15, v0")
    A("v_lshrrev_b32 v7, 4, v0")
    A("v_xor_b32 v8, v6, v7")
    A("v_lshlrev_b32 v8, 4, v8")
    A("v_lshl_add_u32 v8, v7, 8, v8", "v8..v11: source offsets of a 16x256B tile, chunk ^= row")
    A("v_xor_b32 v9, 64, v8\nv_xor_b32 v10, 0x80, v8\nv_xor_b32 v11, 0xc0, v8")
    A("s_lshl_b32 s29, s28, 19\ns_lshl_b32 s28, s28, 12")
    A("s_mov_b32 s18, 0x80000\ns_mov_b32 s19, 0x20000\ns_mov_b32 s14, s18\ns_mov_b32 s15, 0x20000")
    A("s_mov_b32 s34, 0\ns_mov_b32 m0, %d" % INB)
    A("s_waitcnt lgkmcnt(0)")
    A("s_mov_b32 s12, s4\ns_mov_b32 s13, s5", "Q descriptor s[12:15]")
    for i in range(4): A("buffer_load_dwordx4 v%d, s[12:15], s28 offen offset:%d lds" % (8 + i, i * 1024))
    A("s_mov_b32 m0, 0")
    A("s_add_u32 s16, s6, s29\ns_addc_u32 s17, s7, 0", "K descriptor s[16:19]: this group's 512 KiB")
    A("L_p0:", "first %d K units (source offset == LDS offset)" % lead)
    if 8 * lead + 4 > win: A("s_waitcnt vmcnt(%d)" % (win - 4))
    for i in range(4): A("buffer_load_dwordx4 v%d, s[16:19], s34 offen offset:%d nt lds" % (8 + i, i * 1024))
    A("s_addk_i32 s34, 0x1000\ns_mov_b32 m0, s34\ns_cmp_lt_u32 s34, %d\ns_cbranch_scc1 L_p0" % (lead * 8192))
    if stamp:
        for k in range(1, 14): A("s_mov_b32 s%d, 0" % (60 + 2 * k))
    ST(11)
    A("s_setprio 3")
    A("s_bfe_u32 s30, s2, 0x10003", "column half")
    A("s_add_u32 s20, s8, s29\ns_addc_u32 s21, s9, 0\ns_mov_b32 s22, 0x80000\ns_mov_b32 s23, 0x20000", "V descriptor s[20:23]")
    A("v_lshrrev_b32 v2, 3, v0")
    A("v_and_b32 v3, 6, v2")
    A("v_and_b32 v4, 7, v0")
    A("v_xor_b32 v4, v4, v3")
    A("v_lshlrev_b32 v4, 4, v4")
    A("v_lshl_add_u32 v4, v2, 8, v4")
    A("s_lshl_b32 s44, s30, 7")
    A("v_add_u32 v12, s44, v4", "v12..v15: 8 half rows per load, chunk ^= row&6 (offset: adds i*1024 more)")
    A("v_add_u32 v13, 0x400, v12\nv_add_u32 v14, 0x800, v12\nv_add_u32 v15, 0xc00, v12")
    A("v_mov_b32 v20, 0\nv_mov_b32 v21, 0\nv_mov_b32 v22, 0\nv_mov_b32 v23, 0", "zero the hand-over words")
    A("v_lshlrev_b32 v24, 4, v0\nv_add_u32 v24, %d, v24\nds_write_b128 v24, v[20:23]" % DONE)
    A("v_lshlrev_b32 v16, 2, v0\nv_add_u32 v16, %d, v16" % LK, "v16: publish address")
    A("ds_write_b32 v16, v20\nds_write_b32 v16, v20 offset:256")
    A("v_and_b32 v17, 3, v0\nv_lshlrev_b32 v17, 8, v17\nv_add_u32 v17, %d, v17" % DONE, "lane l reads done[l&3]")
    A("s_mov_b32 s35, 0\ns_mov_b32 s36, s34\ns_mov_b32 s37, %d" % VR, "s34/s35 source offsets, s36/s37 LDS slots")
    A("s_mov_b32 s38, 0")
    A("v_mov_b32 v18, 0")
    A("s_waitcnt lgkmcnt(0)")
    A("s_barrier", "hand-over words are zero")
    def wait_pub(pos, hooks):
        A("s_waitcnt vmcnt(%d)" % (win - 1))
        if pos in hooks: hooks[pos]()
    def kunit(hooks, base=0):
        for i in range(4):
            wait_pub(base + i, hooks)
            A("buffer_load_dwordx4 v%d, s[16:19], s34 offen offset:%d nt lds" % (8 + i, i * 1024))
        A("s_add_u32 m0, m0, 4096")
        A("s_add_u32 s44, s34, 4096")
        for i in range(4):
            wait_pub(base + 4 + i, hooks)
            A("buffer_load_dwordx4 v%d, s[16:19], s44 offen offset:%d nt lds" % (8 + i, i * 1024))
        A("s_add_u32 s34, s34, 8192")
        A("s_add_u32 s36, s36, 8192\ns_cmp_eq_u32 s36, %d\ns_cselect_b32 s36, %d, s36" % (KR + NK * 8192, KR))
    def vunit(hooks, base=8):
        A("s_mov_b32 m0, s37")
        A("s_add_u32 s37, s37, 4096\ns_cmp_eq_u32 s37, %d\ns_cselect_b32 s37, %d, s37" % (VR + NV * 4096, VR))
        for i in range(4):
            wait_pub(base + i, hooks)
            A("buffer_load_dwordx4 v%d, s[20:23], s35 offen offset:%d nt lds" % (12 + i, i * 1024))
        A("s_add_u32 s35, s35, 8192")
    dK, pK = divmod(7 + win, 12)
    dV, pV = divmod(11 + win, 12)
    def firstK(i):
        nl = 8 * lead + 12 * i + pK - win + 1
        return max(0, min(nl, 8 * lead) // 8)
    A(".p2align 3\nL_ploop:")
    R("iteration i (s38): K unit i+%d, V unit i.  Step i-%d must be consumed (done words were read one iteration ago)." % (lead, BACK))
    A("s_sub_u32 s39, s38, %d" % BACK)
    A("s_and_b32 s45, s39, 3")
    A("s_waitcnt lgkmcnt(2)")
    A("L_fc:")
    A("v_readlane_b32 s46, v18, s45")
    A("ds_read_b32 v18, v17")
    A("s_nop 1")
    A("s_cmp_gt_i32 s46, s39")
    A("s_cbranch_scc1 L_fd")
    A("s_waitcnt lgkmcnt(0)")
    A("s_branch L_fc")
    A("L_fd:")
    def pubK():
        A("s_add_u32 s45, s38, %d" % (lead + 1 - dK), "K steps landed")
        for i in range(dK):
            if firstK(i) != i + lead + 1 - dK:
                assert firstK(i) <= max(0, i + lead + 1 - dK) or True
                A("s_cmp_eq_u32 s38, %d\ns_cselect_b32 s45, %d, s45" % (i, firstK(i)))
        A("v_mov_b32 v19, s45\nds_write_b32 v16, v19")
    def pubV():
        A("s_add_u32 s45, s38, %d\ns_max_i32 s45, s45, 0" % (1 - dV), "V steps landed")
        A("v_mov_b32 v20, s45\nds_write_b32 v16, v20 offset:256")
    hooks = {}
    if pK == pV: hooks[pK] = lambda: (pubK(), pubV())
    else: hooks[pK] = pubK; hooks[pV] = pubV
    kunit(hooks)
    vunit(hooks)
    A("s_mov_b32 m0, s36")
    A("s_add_u32 s38, s38, 1\ns_cmp_lt_u32 s38, %d\ns_cbranch_scc1 L_ploop" % n1)
    R("tail: the remaining K units first (their softmax then overlaps the last V units), then the remaining V units")
    seq = []
    for u in range(lead): seq += [("K", u)] * 8
    for i in range(n1): seq += [("K", i + lead)] * 8 + [("V", i)] * 4
    nloop = len(seq)
    tail = [("K", u) for u in range(n1 + lead, NS)] + [("V", u) for u in range(n1, NS)]
    for kind, u in tail: seq += [(kind, u)] * (8 if kind == "K" else 4)
    total = len(seq)
    def landed(nl):
        k = v = 0
        for idx in range(nl):
            kind, u = seq[idx]
            if idx + 1 == total or seq[idx + 1] != seq[idx]:
                if kind == "K": k = u + 1
                else: v = u + 1
        return k, v
    i_last = n1 - 1
    cur = {"K": i_last + lead + 1 - dK, "V": i_last + 1 - dV}
    def pub_const(nl):
        k, v = landed(nl)
        v = min(v, EV)
        if k > cur["K"]:
            A("v_mov_b32 v19, %d\nds_write_b32 v16, v19" % k); cur["K"] = k
        if v > cur["V"]:
            A("v_mov_b32 v20, %d\nds_write_b32 v16, v20 offset:256" % v); cur["V"] = v
    n = nloop
    assert BACK >= dV + 1 and lead - dK + BACK >= C + 1 and BACK > dK
    ver = i_last - BACK
    needs = [(u - NV if kind == "V" else u - NK - C) for kind, u in tail]
    for ti, (kind, u) in enumerate(tail):
        if needs[ti] > ver:
            t = min(max(needs[ti:]), needs[ti] + look)
            assert t < EV and cur["V"] >= t + 1 and cur["K"] >= t + C + 1, ("deadlock", kind, u, dict(cur))
            A("L_tc%d:\ns_waitcnt lgkmcnt(0)" % t, "all steps <= %d consumed?" % t)
            for c in range(4): A("v_readlane_b32 s%d, v18, %d" % (46 + c, c))
            A("ds_read_b32 v18, v17\ns_nop 1")
            A("s_min_u32 s46, s46, s47\ns_min_u32 s48, s48, s49\ns_min_u32 s46, s46, s48")
            A("s_cmp_ge_u32 s46, %d\ns_cbranch_scc0 L_tc%d" % (t - 2, t), "every step < min(done) + 3 is consumed")
            ver = t
        if ti + 1 < len(tail) and needs[ti + 1] > ver: A("ds_read_b32 v18, v17")
        cnt = 8 if kind == "K" else 4
        hk = {}
        for p in range(cnt):
            hk[p] = (lambda q: (lambda: pub_const(q - win + 1)))(n + p)
        R("%s unit %d" % (kind, u))
        if kind == "K":
            A("s_mov_b32 m0, s36")
            kunit(hk, 0)
        else: vunit(hk, 0)
        n += cnt
    ST(1)
    x = win - 1
    while cur["K"] < NS or cur["V"] < EV:
        nl = total - x
        k, v = landed(nl); v = min(v, EV)
        if k > cur["K"] or v > cur["V"]:
            A("s_waitcnt vmcnt(%d)" % x)
            pub_const(nl)
        x -= 1
    ST(2)
    yb1 = total - 1 - max(idx for idx in range(total) if seq[idx] == ("V", EV + C - 1))
    A("s_waitcnt vmcnt(%d) lgkmcnt(0)" % yb1)
    ST(5)
    A("s_barrier", "A: V units %d..%d landed" % (EV, EV + C - 1))
    ST(3)
    A("s_waitcnt vmcnt(0)")
    ST(4)
    A("s_barrier", "B: everything landed")
    if stamp: A("s_mov_b32 s3, 0\nv_mov_b32 v5, v0\ns_branch L_stamp")
    A("s_endpgm")
    R("=================================================== consumers (waves 1..4)")
    Q = 16; KF = 32; S = 64; P = 72; VF = 76; O = 92; VA = 108
    R("v16..31 Q | v32..63 K fragments | v64..71 scores | v72..75 P | v76..91 V^T fragments | v92..107 O^T | v1 max, v2 sum, v121 alpha")
    A("L_cons:")
    A("s_barrier")
    A("s_lshr_b32 s3, s3, 6\ns_sub_u32 s3, s3, 1", "s3 = consumer c")
    A("s_bfe_u32 s30, s2, 0x10003")
    A("v_and_b32 v5, 63, v0")
    A("v_and_b32 v6, 15, v5")
    A("v_lshrrev_b32 v7, 4, v5")
    A("s_lshl_b32 s28, s28, 12")
    A("s_mov_b32 s26, 0x80000\ns_mov_b32 s27, 0x20000")
    A("s_mov_b32 s31, 0x%x" % CSC, "log2(e) / sqrt(128)")
    A("v_xor_b32 v12, v6, v7\nv_lshlrev_b32 v12, 4, v12\nv_lshl_add_u32 v12, v6, 8, v12", "v12..15: K / Q fragment read offsets")
    A("v_xor_b32 v13, 64, v12\nv_xor_b32 v14, 0x80, v12\nv_xor_b32 v15, 0xc0, v12")
    A("s_lshl_b32 s44, s3, 8\ns_add_u32 s44, s44, %d" % DONE)
    A("v_lshl_add_u32 v127, v5, 2, s44", "own done block")
    A("s_waitcnt lgkmcnt(0)")
    if stamp:
        for k in range(1, 14): A("s_mov_b32 s%d, 0" % (60 + 2 * k))
    A("s_mov_b32 s24, s10\ns_mov_b32 s25, s11", "out descriptor s[24:27]")
    A("v_lshrrev_b32 v2, 2, v5")
    A("v_and_b32 v4, 6, v2")
    A("v_bfe_u32 v1, v5, 1, 1")
    A("v_xor_b32 v4, v4, v1")
    A("v_lshlrev_b32 v4, 4, v4")
    A("v_lshl_add_u32 v4, v2, 7, v4")
    A("v_and_b32 v1, 1, v5")
    A("v_lshl_add_u32 v4, v1, 3, v4")
    A("s_lshl_b32 s44, s3, 5")
    A("v_xor_b32 v4, s44, v4")
    A("v_add_u32 v%d, %d, v4" % (VA, VR), "v108..111: V^T read addresses, accumulator i = column block c^i")
    for e in range(1, 4): A("v_xor_b32 v%d, %d, v%d" % (VA + e, 32 * e, VA))
    A("v_lshlrev_b32 v8, 4, v5")
    A("s_lshl_b32 s45, s3, 10")
    for i in range(4):
        A("s_xor_b32 s44, s3, %d\ns_lshl_b32 s44, s44, 12\ns_add_u32 s44, s44, s45\ns_add_u32 s44, s44, %d" % (i, INB))
        A("v_add_u32 v%d, s44, v8" % (122 + i), "accumulator %d goes to inbox c^%d, position c" % (i, i))
    A("s_lshl_b32 s44, s3, 11\ns_add_u32 s44, s44, %d\nv_add_u32 v9, s44, v8" % PB, "v9 own P area, v10 P area 0, v8 own inbox")
    A("v_add_u32 v10, %d, v8" % PB)
    A("s_lshl_b32 s44, s3, 12\ns_add_u32 s44, s44, %d\nv_add_u32 v8, s44, v8" % INB)
    A("v_lshlrev_b32 v11, 4, v6\nv_add_u32 v11, %d, v11" % STAT, "statistics: (m_a, m_b, l) per consumer and query")
    A("s_lshl_b32 s44, s3, 8\nv_add_u32 v128, s44, v11")
    A("v_lshlrev_b32 v126, 8, v6")
    A("v_lshl_add_u32 v126, v7, 3, v126", "output offset")
    A("s_lshl_b32 s47, s3, 5\ns_lshl_b32 s45, s30, 7\ns_add_u32 s47, s47, s45\ns_add_u32 s47, s47, s28")
    A("v_mov_b32 v4, %d" % LK)
    for k in range(16): A("v_mov_b32 v%d, 0" % (O + k))
    A("v_mov_b32 v1, 0xff800000")
    A("v_mov_b32 v2, 0")
    A("s_lshl_b32 s36, s3, 13\ns_lshl_b32 s37, s3, 12", "K / V slot offsets")
    A("s_mov_b32 s38, s3", "q")
    A("s_mov_b32 s43, 0")
    A("v_mov_b32 v121, 0")
    for j in range(4): A("v_add_u32 v%d, %d, v%d" % (112 + j, INB, 12 + j))
    ST(2)
    A("L_pq0:", "Q was issued before K unit 0")
    A("ds_read_b32 v3, v4\ns_waitcnt lgkmcnt(0)\nv_readfirstlane_b32 s42, v3")
    A("s_cmp_gt_u32 s42, 0\ns_cbranch_scc0 L_pq0")
    for j in range(4): A("ds_read_b128 v[%d:%d], v%d" % (Q + 4 * j, Q + 4 * j + 3, 112 + j))
    A(".p2align 3\nL_cloop:")
    for j in range(4): A("v_add_u32 v%d, s36, v%d" % (112 + j, 12 + j))
    A("s_branch L_pk1")
    A("L_pk0:")
    A("ds_read_b32 v3, v4\ns_waitcnt lgkmcnt(0)\nv_readfirstlane_b32 s42, v3")
    A("L_pk1:\ns_cmp_gt_u32 s42, s38\ns_cbranch_scc0 L_pk0")
    for tt in range(2):
        for j in range(4):
            r = KF + 16 * tt + 4 * j
            A("ds_read_b128 v[%d:%d], v%d offset:%d" % (r, r + 3, 112 + j, tt * 4096))
    R("O to the scale of step q-4")
    for k in range(16): A("v_mul_f32 v%d, v%d, v121" % (O + k, O + k))
    for e in range(4): A("v_add_u32 v%d, s37, v%d" % (116 + e, VA + e))
    A("s_add_u32 s36, s36, %d\ns_cmp_ge_u32 s36, %d\ns_cselect_b32 s44, %d, 0\ns_sub_u32 s36, s36, s44" % (C * 8192, NK * 8192, NK * 8192))
    for tt in range(2):
        for j in range(4):
            r = KF + 16 * tt + 4 * j
            A("s_waitcnt lgkmcnt(%d)" % (7 - 4 * tt - j))
            c = "0" if j == 0 else "v[%d:%d]" % (S + 4 * tt, S + 4 * tt + 3)
            A("v_mfma_f32_16x16x32_bf16 v[%d:%d], v[%d:%d], v[%d:%d], %s" % (S + 4 * tt, S + 4 * tt + 3, r, r + 3, Q + 4 * j, Q + 4 * j + 3, c))
    R("row max of the raw scores; scores * scale fill the wait states (tile 1 is read 8 states after its last MFMA)")
    A("v_max3_f32 v3, v%d, v%d, v%d" % (S, S + 1, S + 2))
    A("v_max_f32 v3, v3, v%d" % (S + 3))
    for k in range(4): A("v_mul_f32 v%d, s31, v%d" % (S + k, S + k))
    A("s_nop 1")
    A("v_max3_f32 v3, v3, v%d, v%d" % (S + 4, S + 5))
    A("v_max3_f32 v3, v3, v%d, v%d" % (S + 6, S + 7))
    A("v_mov_b32 v120, v3")
    for k in range(4, 6): A("v_mul_f32 v%d, s31, v%d" % (S + k, S + k))
    A("v_permlane16_swap_b32 v3, v120\nv_max_f32 v3, v3, v120")
    A("v_mov_b32 v120, v3")
    for k in range(6, 8): A("v_mul_f32 v%d, s31, v%d" % (S + k, S + k))
    A("v_permlane32_swap_b32 v3, v120\nv_max_f32 v3, v3, v120")
    A("v_mul_f32 v3, s31, v3", "rounds like the largest scaled score: x - max <= 0, = 0 at the max")
    A("v_max_f32 v3, v3, v1", "v3 = new running max (scaled)")
    for k in range(8): A("v_sub_f32 v%d, v%d, v3" % (S + k, S + k))
    A("v_sub_f32 v121, v1, v3")
    A("v_mov_b32 v1, v3")
    for k in range(8): A("v_exp_f32 v%d, v%d" % (S + k, S + k))
    A("v_exp_f32 v121, v121")
    A("s_cmp_ge_u32 s38, %d\ns_cbranch_scc1 L_last" % (NS - C))
    A("v_mul_f32 v2, v2, v121")
    for k in range(8): A("v_add_f32 v2, v2, v%d" % (S + k))
    A("s_sub_u32 s39, s38, %d" % C, "PV step q-4 (none in the first pass)")
    A("s_cbranch_scc1 L_nopv")
    A("s_branch L_pv1")
    A("L_pv0:")
    A("ds_read_b32 v3, v4 offset:256\ns_waitcnt lgkmcnt(0)\nv_readfirstlane_b32 s43, v3")
    A("L_pv1:\ns_cmp_gt_u32 s43, s39\ns_cbranch_scc0 L_pv0")
    for e in range(4):
        for tt in range(2):
            r = VF + 4 * e + 2 * tt
            A("ds_read_b64_tr_b16 v[%d:%d], v%d offset:%d" % (r, r + 1, 116 + e, tt * 2048))
    A("s_add_u32 s39, s39, 1")
    A("v_mov_b32 v3, s39")
    A("s_add_u32 s37, s37, %d\ns_cmp_ge_u32 s37, %d\ns_cselect_b32 s44, %d, 0\ns_sub_u32 s37, s37, s44" % (C * 4096, NV * 4096, NV * 4096))
    for e in range(4):
        A("s_waitcnt lgkmcnt(%d)" % (6 - 2 * e))
        A("v_mfma_f32_16x16x32_bf16 v[%d:%d], v[%d:%d], v[%d:%d], v[%d:%d]" % (O + 4 * e, O + 4 * e + 3, VF + 4 * e, VF + 4 * e + 3, P, P + 3, O + 4 * e, O + 4 * e + 3))
    A("ds_write_b32 v127, v3", "step q-4 consumed")
    A("L_nopv:")
    for k in range(4): A("v_cvt_pk_bf16_f32 v%d, v%d, v%d" % (P + k, S + 2 * k, S + 2 * k + 1))
    A("s_add_u32 s38, s38, %d" % C)
    A("s_cmp_lt_u32 s38, %d\ns_cbranch_scc1 L_cloop" % (NS - C))
    R("after pass %d+c: post P_a = P(%d+c), its max m_a and the O blocks at that scale (O is dead from here on)" % (EV, EV))
    A("ds_write_b128 v9, v[%d:%d]" % (P, P + 3))
    A("ds_write_b32 v128, v1")
    for i in range(4):
        for k in range(4): A("v_mul_f32 v%d, v%d, v121" % (O + 4 * i + k, O + 4 * i + k))
        A("ds_write_b128 v%d, v[%d:%d]" % (122 + i, O + 4 * i, O + 4 * i + 3))
    A("s_branch L_cloop")
    R("pass %d+c: post P_b and m_b, then finish column block c for the steps %d..%d" % (NS - C, EV, NS - 1))
    A("L_last:")
    for k in range(4): A("v_cvt_pk_bf16_f32 v%d, v%d, v%d" % (P + k, S + 2 * k, S + 2 * k + 1))
    A("ds_write_b32 v128, v1 offset:4")
    A("ds_write_b128 v9, v[%d:%d] offset:1024" % (P, P + 3))
    A("s_waitcnt lgkmcnt(0)")
    ST(3)
    A("s_barrier", "A")
    E = 136; PX = 32; LL = 144; OB = 148
    def rd(h, i):
        slot = (EV + 4 * h + i) % NV
        for tt in range(2):
            r = VF + 4 * i + 2 * tt
            A("ds_read_b64_tr_b16 v[%d:%d], v%d offset:%d" % (r, r + 1, VA, slot * 4096 + tt * 2048))
    for i in range(4): A("ds_read_b64 v[%d:%d], v11 offset:%d" % (E + 2 * i, E + 2 * i + 1, i * 256))
    def grp(i):
        A("ds_read_b128 v[%d:%d], v8 offset:%d" % (O + 4 * i, O + 4 * i + 3, i * 1024))
        A("ds_read_b128 v[%d:%d], v10 offset:%d" % (PX + 4 * i, PX + 4 * i + 3, i * 2048))
        rd(0, i)
    def mfa(i): A("v_mfma_f32_16x16x32_bf16 v[%d:%d], v[%d:%d], v[%d:%d], v[%d:%d]" % (O + 4 * i, O + 4 * i + 3, VF + 4 * i, VF + 4 * i + 3, PX + 4 * i, PX + 4 * i + 3, O + 4 * i, O + 4 * i + 3))
    grp(0); grp(1)
    A("v_mul_f32 v2, v2, v121")
    for k in range(0, 8, 2): A("v_add_f32 v%d, v%d, v%d" % (S + k, S + k, S + k + 1))
    A("v_add_f32 v%d, v%d, v%d\nv_add_f32 v%d, v%d, v%d" % (S, S, S + 2, S + 4, S + 4, S + 6))
    A("v_add_f32 v2, v2, v%d\nv_add_f32 v2, v2, v%d" % (S, S + 4))
    A("s_waitcnt lgkmcnt(8)")
    grp(2)
    A("v_mov_b32 v120, v2")
    A("v_max3_f32 v1, v%d, v%d, v%d" % (E + 1, E + 3, E + 5))
    A("v_max_f32 v1, v1, v%d" % (E + 7), "v1 = max of the whole row")
    A("v_permlane16_swap_b32 v2, v120\nv_add_f32 v2, v2, v120")
    A("s_waitcnt lgkmcnt(8)"); mfa(0)
    grp(3)
    A("v_mov_b32 v120, v2")
    for k in range(8): A("v_sub_f32 v%d, v%d, v1" % (E + k, E + k))
    A("v_permlane32_swap_b32 v2, v120\nv_add_f32 v2, v2, v120")
    A("s_waitcnt lgkmcnt(8)"); mfa(1)
    A("ds_write_b32 v128, v2 offset:8", "own l")
    for k in range(4): A("v_exp_f32 v%d, v%d" % (E + k, E + k))
    A("s_waitcnt lgkmcnt(5)"); mfa(2)
    for i in range(4): A("ds_read_b128 v[%d:%d], v10 offset:%d" % (PX + 16 + 4 * i, PX + 16 + 4 * i + 3, i * 2048 + 1024))
    for k in range(4, 8): A("v_exp_f32 v%d, v%d" % (E + k, E + k))
    A("s_waitcnt lgkmcnt(5)"); mfa(3)
    for k in range(4): A("v_mul_f32 v%d, v%d, v%d" % (O + k, O + k, E))
    for i in range(1, 4):
        for k in range(4): A("v_fmac_f32 v%d, v%d, v%d" % (O + k, E + 2 * i, O + 4 * i + k))
    A("s_waitcnt lgkmcnt(0)")
    ST(4)
    A("s_barrier", "B")
    ST(5)
    rd(1, 0)
    for i in range(4): A("ds_read_b32 v%d, v11 offset:%d" % (LL + i, i * 256 + 8))
    for i in range(1, 4): rd(1, i)
    def mfb(i):
        p = PX + 16 + 4 * i
        A("v_mfma_f32_16x16x32_bf16 v[%d:%d], v[%d:%d], v[%d:%d], 0" % (OB + 4 * i, OB + 4 * i + 3, VF + 4 * i, VF + 4 * i + 3, p, p + 3))
    A("s_waitcnt lgkmcnt(10)"); mfb(0)
    A("s_waitcnt lgkmcnt(4)"); mfb(1)
    A("v_mul_f32 v2, v%d, v%d" % (E + 1, LL))
    A("v_fmac_f32 v2, v%d, v%d" % (E + 3, LL + 1))
    A("s_waitcnt lgkmcnt(2)"); mfb(2)
    A("v_fmac_f32 v2, v%d, v%d" % (E + 5, LL + 2))
    A("v_fmac_f32 v2, v%d, v%d" % (E + 7, LL + 3))
    A("s_waitcnt lgkmcnt(0)"); mfb(3)
    A("v_rcp_f32 v2, v2")
    for i in range(4):
        for k in range(4): A("v_fmac_f32 v%d, v%d, v%d" % (O + k, E + 2 * i + 1, OB + 4 * i + k))
    for k in range(4): A("v_mul_f32 v%d, v%d, v2" % (O + k, O + k))
    A("v_cvt_pk_bf16_f32 v%d, v%d, v%d" % (O, O, O + 1))
    A("v_cvt_pk_bf16_f32 v%d, v%d, v%d" % (O + 1, O + 2, O + 3))
    A("buffer_store_dwordx2 v[%d:%d], v126, s[24:27], s47 offen" % (O, O + 1))
    if stamp:
        ST(7)
        A("s_waitcnt vmcnt(0)")
        ST(8)
        A("s_add_u32 s3, s3, 1")
        A("L_stamp:")
        A("s_getreg_b32 s50, hwreg(HW_REG_XCC_ID)")
        A("s_getreg_b32 s51, hwreg(HW_REG_HW_ID)")
        A("s_and_b32 s50, s50, 15\ns_or_b32 s50, s50, 0xabcd00")
        A("s_add_u32 s40, s40, 0x8000000\ns_addc_u32 s41, s41, 0")
        A("s_lshl_b32 s34, s2, 3\ns_add_u32 s34, s34, s3\ns_lshl_b32 s34, s34, 6")
        A("v_mov_b32 v8, s50\nv_mov_b32 v9, s51")
        for k in range(14): A("v_mov_b32 v%d, s%d" % (10 + k, 60 + 2 * k))
        A("v_mov_b32 v7, s34")
        A("v_cmp_eq_u32 vcc, 0, v5")
        A("s_and_saveexec_b64 s[52:53], vcc")
        for k in range(4): A("global_store_dwordx4 v7, v[%d:%d], s[40:41] offset:%d" % (8 + 4 * k, 11 + 4 * k, 16 * k))
    A("L_end:\ns_endpgm")
    A('.section .rodata,"a"\n.p2align 6\n.amdhsa_kernel %s' % KN)
    A("  .amdhsa_next_free_vgpr 168\n  .amdhsa_next_free_sgpr %d\n  .amdhsa_accum_offset 168" % (96 if stamp else 56))
    A("  .amdhsa_group_segment_fixed_size 0\n  .amdhsa_kernarg_size 48\n  .amdhsa_user_sgpr_count 2")
    A("  .amdhsa_user_sgpr_kernarg_segment_ptr 1\n  .amdhsa_system_sgpr_workgroup_id_x 1\n.end_amdhsa_kernel")
    open(path, "w").write("\n".join(L) + "\n")

if __name__ == "__main__":
    import mk
    gen("f2.s"); gen("f2b.s"); gen("f2c.s"); gen("f2_st.s", stamp=True)
    mk.finish(["f2", "v12f", "f2b", "x_k10v12pf_a", "f2c", "f1", "f2_st"], ["dev/an16r.py"])
```

```python
import sys, struct
KN = "standalone__gqa_softmax__sampling_kernel"
HDR = open("standalone__gqa_softmax__sampling.s.ref").read().split("; Override")[0]
def f2u(x): return struct.unpack("<I", struct.pack("<f", x))[0]
CSC = f2u(128 ** -0.5 * 1.4426950408889634)

DOC = """;
;
;
;"""

def gen(path, win=36, lead=4, NK=10, NV=12, n1=56, look=3, stamp=False, rot=((4, 1), (5, 0), (0, 5), (1, 4))):
    L = []
    def A(x, c=None):
        if c is None: L.append(x)
        else:
            ls = x.split("\n"); ls[0] = "%-64s ; %s" % (ls[0], c); L.append("\n".join(ls))
    def R(c): L.append("; " + c)
    C = 4; NS = 64
    BACK = min(NV, NK + C - lead)
    KR = 0; VR = NK * 8192; INB = VR + NV * 4096
    PB = INB + 16384; STAT = PB + 8192; FL = STAT + 1024
    EV = NS - 2 * C
    LDS = FL + 1536
    assert LDS <= 163840 and NK > lead and NV >= 8
    DONE = FL; LK = FL + 1024
    def ST(k):
        if stamp: A("s_memrealtime s[%d:%d]\ns_waitcnt lgkmcnt(0)" % (60 + 2 * k, 61 + 2 * k))
    A(HDR.rstrip())
    A("; @launch grid=(256,1,1) block=(320,1,1) lds=%d" % LDS)
    A(DOC)
    R("LDS map: K ring %d x 8 KiB at 0 | V ring %d x 4 KiB at %d | Q tile, later 4 inboxes x 4 KiB at %d | P fragments at %d |" % (NK, NV, VR, INB, PB))
    R("         statistics at %d | done words (4 x 256 B) at %d | landed K at %d, landed V at %d" % (STAT, DONE, LK, LK + 256))
    A('.amdgcn_target "amdgcn-amd-amdhsa--gfx950"')
    A(".text\n.globl %s\n.p2align 8\n.type %s,@function\n%s:" % (KN, KN, KN))
    A("s_load_dwordx8 s[4:11], s[0:1], 0", "q, k, v, out")
    if stamp:
        A("s_memrealtime s[60:61]")
        A("s_load_dwordx2 s[40:41], s[0:1], 40")
    A("v_readfirstlane_b32 s3, v0")
    A("s_cmpk_ge_u32 s2, 0x100", "extra workgroups leave")
    A("s_cbranch_scc1 L_end")
    A("s_lshr_b32 s28, s2, 4\ns_and_b32 s29, s2, 7\ns_lshl3_add_u32 s28, s28, s29", "s28 = group")
    A("s_cmp_ge_u32 s3, 64")
    A("s_cbranch_scc0 L_prod")
    R("consumers pull this kernel's code into L2 with one load (one dword per 128-byte line)")
    A("s_getpc_b64 s[48:49]\nL_pc:")
    A("v_subrev_u32 v1, 64, v0")
    A("v_lshlrev_b32 v1, 7, v1")
    A("v_min_u32 v1, L_end-L_pc, v1")
    A("global_load_dword v167, v1, s[48:49]")
    A("s_branch L_cons")
    R("=================================================== producer (wave 0, v0 = lane)")
    A("L_prod:")
    A("v_and_b32 v6, 15, v0")
    A("v_lshrrev_b32 v7, 4, v0")
    A("v_xor_b32 v8, v6, v7")
    A("v_lshlrev_b32 v8, 4, v8")
    A("v_lshl_add_u32 v8, v7, 8, v8", "v8..v11: source offsets of a 16x256B tile, chunk ^= row")
    A("v_xor_b32 v9, 64, v8\nv_xor_b32 v10, 0x80, v8\nv_xor_b32 v11, 0xc0, v8")
    A("s_lshl_b32 s29, s28, 19\ns_lshl_b32 s28, s28, 12")
    A("s_mov_b32 s18, 0x80000\ns_mov_b32 s19, 0x20000\ns_mov_b32 s14, s18\ns_mov_b32 s15, 0x20000")
    R("the key order of a group is rotated (softmax does not care): workgroup bits 4,5 -> 0..3 steps, so that the pairs of one XCD do not")
    R("walk the channel interleave in phase; bits 0,1 -> 256 / 128 KiB, so that the four groups of a 2 MiB page sit in different DRAM bank phases")
    maxrot = 0
    if rot:
        for n_, (j, k) in enumerate(rot):
            A("s_bfe_u32 s%d, s2, 0x%x\ns_lshl_b32 s%d, s%d, %d" % (34 + min(n_, 1), 0x10000 | j, 34 + min(n_, 1), 34 + min(n_, 1), 13 + k))
            if n_: A("s_xor_b32 s34, s34, s35")
            maxrot |= 1 << k
    else: A("s_mov_b32 s34, 0")
    wrap_in_loop = n1 + lead - 1 + maxrot >= NS
    A("s_mov_b32 s35, s34")
    A("s_mov_b32 m0, %d" % INB)
    A("s_waitcnt lgkmcnt(0)")
    A("s_mov_b32 s12, s4\ns_mov_b32 s13, s5", "Q descriptor s[12:15]")
    for i in range(4): A("buffer_load_dwordx4 v%d, s[12:15], s28 offen offset:%d lds" % (8 + i, i * 1024))
    A("s_mov_b32 m0, 0")
    A("s_add_u32 s16, s6, s29\ns_addc_u32 s17, s7, 0", "K descriptor s[16:19]: this group's 512 KiB")
    assert lead + maxrot <= NS
    A("L_p0:", "first %d K units" % lead)
    if 8 * lead + 4 > win: A("s_waitcnt vmcnt(%d)" % (win - 4))
    for i in range(4): A("buffer_load_dwordx4 v%d, s[16:19], s34 offen offset:%d nt lds" % (8 + i, i * 1024))
    if maxrot + lead > NS - 1: raise SystemExit("wrap in prologue")
    A("s_add_u32 m0, m0, 0x1000\ns_addk_i32 s34, 0x1000\ns_cmp_lt_u32 m0, %d\ns_cbranch_scc1 L_p0" % (lead * 8192))
    if stamp:
        for k in range(1, 14): A("s_mov_b32 s%d, 0" % (60 + 2 * k))
    ST(11)
    A("s_setprio 3")
    A("s_bfe_u32 s30, s2, 0x10003", "column half")
    A("s_add_u32 s20, s8, s29\ns_addc_u32 s21, s9, 0\ns_mov_b32 s22, 0x80000\ns_mov_b32 s23, 0x20000", "V descriptor s[20:23]")
    A("v_lshrrev_b32 v2, 3, v0")
    A("v_and_b32 v3, 6, v2")
    A("v_and_b32 v4, 7, v0")
    A("v_xor_b32 v4, v4, v3")
    A("v_lshlrev_b32 v4, 4, v4")
    A("v_lshl_add_u32 v4, v2, 8, v4")
    A("s_lshl_b32 s44, s30, 7")
    A("v_add_u32 v12, s44, v4", "v12..v15: 8 half rows per load, chunk ^= row&6 (offset: adds i*1024 more)")
    A("v_add_u32 v13, 0x400, v12\nv_add_u32 v14, 0x800, v12\nv_add_u32 v15, 0xc00, v12")
    A("v_mov_b32 v20, 0\nv_mov_b32 v21, 0\nv_mov_b32 v22, 0\nv_mov_b32 v23, 0", "zero the hand-over words")
    A("v_lshlrev_b32 v24, 4, v0\nv_add_u32 v24, %d, v24\nds_write_b128 v24, v[20:23]" % DONE)
    A("v_lshlrev_b32 v16, 2, v0\nv_add_u32 v16, %d, v16" % LK, "v16: publish address")
    A("ds_write_b32 v16, v20\nds_write_b32 v16, v20 offset:256")
    A("v_and_b32 v17, 3, v0\nv_lshlrev_b32 v17, 8, v17\nv_add_u32 v17, %d, v17" % DONE, "lane l reads done[l&3]")
    A("s_mov_b32 s36, %d\ns_mov_b32 s37, %d" % (lead * 8192, VR), "s34/s35 source offsets, s36/s37 LDS slots")
    A("s_mov_b32 s38, 0")
    A("v_mov_b32 v18, 0")
    A("s_waitcnt lgkmcnt(0)")
    A("s_barrier", "hand-over words are zero")
    def wait_pub(pos, hooks):
        A("s_waitcnt vmcnt(%d)" % (win - 1))
        if pos in hooks: hooks[pos]()
    def kunit(hooks, base=0, wrap=False):
        if wrap: A("s_and_b32 s34, s34, 0x7ffff")
        for i in range(4):
            wait_pub(base + i, hooks)
            A("buffer_load_dwordx4 v%d, s[16:19], s34 offen offset:%d nt lds" % (8 + i, i * 1024))
        A("s_add_u32 m0, m0, 4096")
        A("s_add_u32 s44, s34, 4096")
        for i in range(4):
            wait_pub(base + 4 + i, hooks)
            A("buffer_load_dwordx4 v%d, s[16:19], s44 offen offset:%d nt lds" % (8 + i, i * 1024))
        A("s_add_u32 s34, s34, 8192")
        A("s_add_u32 s36, s36, 8192\ns_cmp_eq_u32 s36, %d\ns_cselect_b32 s36, %d, s36" % (KR + NK * 8192, KR))
    def vunit(hooks, base=8, wrap=False):
        if wrap: A("s_and_b32 s35, s35, 0x7ffff")
        A("s_mov_b32 m0, s37")
        A("s_add_u32 s37, s37, 4096\ns_cmp_eq_u32 s37, %d\ns_cselect_b32 s37, %d, s37" % (VR + NV * 4096, VR))
        for i in range(4):
            wait_pub(base + i, hooks)
            A("buffer_load_dwordx4 v%d, s[20:23], s35 offen offset:%d nt lds" % (12 + i, i * 1024))
        A("s_add_u32 s35, s35, 8192")
    dK, pK = divmod(7 + win, 12)
    dV, pV = divmod(11 + win, 12)
    def firstK(i):
        nl = 8 * lead + 12 * i + pK - win + 1
        return max(0, min(nl, 8 * lead) // 8)
    A(".p2align 3\nL_ploop:")
    R("iteration i (s38): K unit i+%d, V unit i.  Step i-%d must be consumed (done words were read one iteration ago)." % (lead, BACK))
    A("s_sub_u32 s39, s38, %d" % BACK)
    A("s_and_b32 s45, s39, 3")
    A("s_waitcnt lgkmcnt(2)")
    A("L_fc:")
    A("v_readlane_b32 s46, v18, s45")
    A("ds_read_b32 v18, v17")
    A("s_nop 1")
    A("s_cmp_gt_i32 s46, s39")
    A("s_cbranch_scc1 L_fd")
    A("s_waitcnt lgkmcnt(0)")
    A("s_branch L_fc")
    A("L_fd:")
    def pubK():
        A("s_add_u32 s45, s38, %d" % (lead + 1 - dK), "K steps landed")
        for i in range(dK):
            if firstK(i) != i + lead + 1 - dK:
                assert firstK(i) <= max(0, i + lead + 1 - dK) or True
                A("s_cmp_eq_u32 s38, %d\ns_cselect_b32 s45, %d, s45" % (i, firstK(i)))
        A("v_mov_b32 v19, s45\nds_write_b32 v16, v19")
    def pubV():
        A("s_add_u32 s45, s38, %d\ns_max_i32 s45, s45, 0" % (1 - dV), "V steps landed")
        A("v_mov_b32 v20, s45\nds_write_b32 v16, v20 offset:256")
    hooks = {}
    if pK == pV: hooks[pK] = lambda: (pubK(), pubV())
    else: hooks[pK] = pubK; hooks[pV] = pubV
    kunit(hooks, wrap=wrap_in_loop)
    vunit(hooks, wrap=wrap_in_loop)
    A("s_mov_b32 m0, s36")
    A("s_add_u32 s38, s38, 1\ns_cmp_lt_u32 s38, %d\ns_cbranch_scc1 L_ploop" % n1)
    R("tail: the remaining K units first (their softmax then overlaps the last V units), then the remaining V units")
    seq = []
    for u in range(lead): seq += [("K", u)] * 8
    for i in range(n1): seq += [("K", i + lead)] * 8 + [("V", i)] * 4
    nloop = len(seq)
    tail = [("K", u) for u in range(n1 + lead, NS)] + [("V", u) for u in range(n1, NS)]
    for kind, u in tail: seq += [(kind, u)] * (8 if kind == "K" else 4)
    total = len(seq)
    def landed(nl):
        k = v = 0
        for idx in range(nl):
            kind, u = seq[idx]
            if idx + 1 == total or seq[idx + 1] != seq[idx]:
                if kind == "K": k = u + 1
                else: v = u + 1
        return k, v
    i_last = n1 - 1
    cur = {"K": i_last + lead + 1 - dK, "V": i_last + 1 - dV}
    def pub_const(nl):
        k, v = landed(nl)
        v = min(v, EV)
        if k > cur["K"]:
            A("v_mov_b32 v19, %d\nds_write_b32 v16, v19" % k); cur["K"] = k
        if v > cur["V"]:
            A("v_mov_b32 v20, %d\nds_write_b32 v16, v20 offset:256" % v); cur["V"] = v
    n = nloop
    assert BACK >= dV + 1 and lead - dK + BACK >= C + 1 and BACK > dK
    ver = i_last - BACK
    needs = [(u - NV if kind == "V" else u - NK - C) for kind, u in tail]
    for ti, (kind, u) in enumerate(tail):
        if needs[ti] > ver:
            t = min(max(needs[ti:]), needs[ti] + look)
            assert t < EV and cur["V"] >= t + 1 and cur["K"] >= t + C + 1, ("deadlock", kind, u, dict(cur))
            A("L_tc%d:\ns_waitcnt lgkmcnt(0)" % t, "all steps <= %d consumed?" % t)
            for c in range(4): A("v_readlane_b32 s%d, v18, %d" % (46 + c, c))
            A("ds_read_b32 v18, v17\ns_nop 1")
            A("s_min_u32 s46, s46, s47\ns_min_u32 s48, s48, s49\ns_min_u32 s46, s46, s48")
            A("s_cmp_ge_u32 s46, %d\ns_cbranch_scc0 L_tc%d" % (t - 2, t), "every step < min(done) + 3 is consumed")
            ver = t
        if ti + 1 < len(tail) and needs[ti + 1] > ver: A("ds_read_b32 v18, v17")
        cnt = 8 if kind == "K" else 4
        hk = {}
        for p in range(cnt):
            hk[p] = (lambda q: (lambda: pub_const(q - win + 1)))(n + p)
        R("%s unit %d" % (kind, u))
        if kind == "K":
            A("s_mov_b32 m0, s36")
            kunit(hk, 0, wrap=(u + maxrot >= NS))
        else: vunit(hk, 0, wrap=(u + maxrot >= NS))
        n += cnt
    ST(1)
    x = win - 1
    while cur["K"] < NS or cur["V"] < EV:
        nl = total - x
        k, v = landed(nl); v = min(v, EV)
        if k > cur["K"] or v > cur["V"]:
            A("s_waitcnt vmcnt(%d)" % x)
            pub_const(nl)
        x -= 1
    ST(2)
    yb1 = total - 1 - max(idx for idx in range(total) if seq[idx] == ("V", EV + C - 1))
    A("s_waitcnt vmcnt(%d) lgkmcnt(0)" % yb1)
    ST(5)
    A("s_barrier", "A: V units %d..%d landed" % (EV, EV + C - 1))
    ST(3)
    A("s_waitcnt vmcnt(0)")
    ST(4)
    A("s_barrier", "B: everything landed")
    if stamp: A("s_mov_b32 s3, 0\nv_mov_b32 v5, v0\ns_branch L_stamp")
    A("s_endpgm")
    R("=================================================== consumers (waves 1..4)")
    Q = 16; KF = 32; S = 64; P = 72; VF = 76; O = 92; VA = 108
    R("v16..31 Q | v32..63 K fragments | v64..71 scores | v72..75 P | v76..91 V^T fragments | v92..107 O^T | v1 max, v2 sum, v121 alpha")
    A("L_cons:")
    A("s_barrier")
    A("s_lshr_b32 s3, s3, 6\ns_sub_u32 s3, s3, 1", "s3 = consumer c")
    A("s_bfe_u32 s30, s2, 0x10003")
    A("v_and_b32 v5, 63, v0")
    A("v_and_b32 v6, 15, v5")
    A("v_lshrrev_b32 v7, 4, v5")
    A("s_lshl_b32 s28, s28, 12")
    A("s_mov_b32 s26, 0x80000\ns_mov_b32 s27, 0x20000")
    A("s_mov_b32 s31, 0x%x" % CSC, "log2(e) / sqrt(128)")
    A("v_xor_b32 v12, v6, v7\nv_lshlrev_b32 v12, 4, v12\nv_lshl_add_u32 v12, v6, 8, v12", "v12..15: K / Q fragment read offsets")
    A("v_xor_b32 v13, 64, v12\nv_xor_b32 v14, 0x80, v12\nv_xor_b32 v15, 0xc0, v12")
    A("s_lshl_b32 s44, s3, 8\ns_add_u32 s44, s44, %d" % DONE)
    A("v_lshl_add_u32 v127, v5, 2, s44", "own done block")
    A("s_waitcnt lgkmcnt(0)")
    if stamp:
        for k in range(1, 14): A("s_mov_b32 s%d, 0" % (60 + 2 * k))
    A("s_mov_b32 s24, s10\ns_mov_b32 s25, s11", "out descriptor s[24:27]")
    A("v_lshrrev_b32 v2, 2, v5")
    A("v_and_b32 v4, 6, v2")
    A("v_bfe_u32 v1, v5, 1, 1")
    A("v_xor_b32 v4, v4, v1")
    A("v_lshlrev_b32 v4, 4, v4")
    A("v_lshl_add_u32 v4, v2, 7, v4")
    A("v_and_b32 v1, 1, v5")
    A("v_lshl_add_u32 v4, v1, 3, v4")
    A("s_lshl_b32 s44, s3, 5")
    A("v_xor_b32 v4, s44, v4")
    A("v_add_u32 v%d, %d, v4" % (VA, VR), "v108..111: V^T read addresses, accumulator i = column block c^i")
    for e in range(1, 4): A("v_xor_b32 v%d, %d, v%d" % (VA + e, 32 * e, VA))
    A("v_lshlrev_b32 v8, 4, v5")
    A("s_lshl_b32 s45, s3, 10")
    for i in range(4):
        A("s_xor_b32 s44, s3, %d\ns_lshl_b32 s44, s44, 12\ns_add_u32 s44, s44, s45\ns_add_u32 s44, s44, %d" % (i, INB))
        A("v_add_u32 v%d, s44, v8" % (122 + i), "accumulator %d goes to inbox c^%d, position c" % (i, i))
    A("s_lshl_b32 s44, s3, 11\ns_add_u32 s44, s44, %d\nv_add_u32 v9, s44, v8" % PB, "v9 own P area, v10 P area 0, v8 own inbox")
    A("v_add_u32 v10, %d, v8" % PB)
    A("s_lshl_b32 s44, s3, 12\ns_add_u32 s44, s44, %d\nv_add_u32 v8, s44, v8" % INB)
    A("v_lshlrev_b32 v11, 4, v6\nv_add_u32 v11, %d, v11" % STAT, "statistics: (m_a, m_b, l) per consumer and query")
    A("s_lshl_b32 s44, s3, 8\nv_add_u32 v128, s44, v11")
    A("v_lshlrev_b32 v126, 8, v6")
    A("v_lshl_add_u32 v126, v7, 3, v126", "output offset")
    A("s_lshl_b32 s47, s3, 5\ns_lshl_b32 s45, s30, 7\ns_add_u32 s47, s47, s45\ns_add_u32 s47, s47, s28")
    A("v_mov_b32 v4, %d" % LK)
    for k in range(16): A("v_mov_b32 v%d, 0" % (O + k))
    A("v_mov_b32 v1, 0xff800000")
    A("v_mov_b32 v2, 0")
    A("s_lshl_b32 s36, s3, 13\ns_lshl_b32 s37, s3, 12", "K / V slot offsets")
    A("s_mov_b32 s38, s3", "q")
    A("s_mov_b32 s43, 0")
    A("v_mov_b32 v121, 0")
    for j in range(4): A("v_add_u32 v%d, %d, v%d" % (112 + j, INB, 12 + j))
    ST(2)
    A("L_pq0:", "Q was issued before K unit 0")
    A("ds_read_b32 v3, v4\ns_waitcnt lgkmcnt(0)\nv_readfirstlane_b32 s42, v3")
    A("s_cmp_gt_u32 s42, 0\ns_cbranch_scc0 L_pq0")
    for j in range(4): A("ds_read_b128 v[%d:%d], v%d" % (Q + 4 * j, Q + 4 * j + 3, 112 + j))
    A(".p2align 3\nL_cloop:")
    for j in range(4): A("v_add_u32 v%d, s36, v%d" % (112 + j, 12 + j))
    A("s_branch L_pk1")
    A("L_pk0:")
    A("ds_read_b32 v3, v4\ns_waitcnt lgkmcnt(0)\nv_readfirstlane_b32 s42, v3")
    A("L_pk1:\ns_cmp_gt_u32 s42, s38\ns_cbranch_scc0 L_pk0")
    for tt in range(2):
        for j in range(4):
            r = KF + 16 * tt + 4 * j
            A("ds_read_b128 v[%d:%d], v%d offset:%d" % (r, r + 3, 112 + j, tt * 4096))
    R("O to the scale of step q-4")
    for k in range(16): A("v_mul_f32 v%d, v%d, v121" % (O + k, O + k))
    for e in range(4): A("v_add_u32 v%d, s37, v%d" % (116 + e, VA + e))
    A("s_add_u32 s36, s36, %d\ns_cmp_ge_u32 s36, %d\ns_cselect_b32 s44, %d, 0\ns_sub_u32 s36, s36, s44" % (C * 8192, NK * 8192, NK * 8192))
    for tt in range(2):
        for j in range(4):
            r = KF + 16 * tt + 4 * j
            A("s_waitcnt lgkmcnt(%d)" % (7 - 4 * tt - j))
            c = "0" if j == 0 else "v[%d:%d]" % (S + 4 * tt, S + 4 * tt + 3)
            A("v_mfma_f32_16x16x32_bf16 v[%d:%d], v[%d:%d], v[%d:%d], %s" % (S + 4 * tt, S + 4 * tt + 3, r, r + 3, Q + 4 * j, Q + 4 * j + 3, c))
    R("row max of the raw scores; scores * scale fill the wait states (tile 1 is read 8 states after its last MFMA)")
    A("v_max3_f32 v3, v%d, v%d, v%d" % (S, S + 1, S + 2))
    A("v_max_f32 v3, v3, v%d" % (S + 3))
    for k in range(4): A("v_mul_f32 v%d, s31, v%d" % (S + k, S + k))
    A("s_nop 1")
    A("v_max3_f32 v3, v3, v%d, v%d" % (S + 4, S + 5))
    A("v_max3_f32 v3, v3, v%d, v%d" % (S + 6, S + 7))
    A("v_mov_b32 v120, v3")
    for k in range(4, 6): A("v_mul_f32 v%d, s31, v%d" % (S + k, S + k))
    A("v_permlane16_swap_b32 v3, v120\nv_max_f32 v3, v3, v120")
    A("v_mov_b32 v120, v3")
    for k in range(6, 8): A("v_mul_f32 v%d, s31, v%d" % (S + k, S + k))
    A("v_permlane32_swap_b32 v3, v120\nv_max_f32 v3, v3, v120")
    A("v_mul_f32 v3, s31, v3", "rounds like the largest scaled score: x - max <= 0, = 0 at the max")
    A("v_max_f32 v3, v3, v1", "v3 = new running max (scaled)")
    for k in range(8): A("v_sub_f32 v%d, v%d, v3" % (S + k, S + k))
    A("v_sub_f32 v121, v1, v3")
    A("v_mov_b32 v1, v3")
    for k in range(8): A("v_exp_f32 v%d, v%d" % (S + k, S + k))
    A("v_exp_f32 v121, v121")
    A("s_cmp_ge_u32 s38, %d\ns_cbranch_scc1 L_last" % (NS - C))
    A("v_mul_f32 v2, v2, v121")
    for k in range(8): A("v_add_f32 v2, v2, v%d" % (S + k))
    A("s_sub_u32 s39, s38, %d" % C, "PV step q-4 (none in the first pass)")
    A("s_cbranch_scc1 L_nopv")
    A("s_branch L_pv1")
    A("L_pv0:")
    A("ds_read_b32 v3, v4 offset:256\ns_waitcnt lgkmcnt(0)\nv_readfirstlane_b32 s43, v3")
    A("L_pv1:\ns_cmp_gt_u32 s43, s39\ns_cbranch_scc0 L_pv0")
    for e in range(4):
        for tt in range(2):
            r = VF + 4 * e + 2 * tt
            A("ds_read_b64_tr_b16 v[%d:%d], v%d offset:%d" % (r, r + 1, 116 + e, tt * 2048))
    A("s_add_u32 s39, s39, 1")
    A("v_mov_b32 v3, s39")
    A("s_add_u32 s37, s37, %d\ns_cmp_ge_u32 s37, %d\ns_cselect_b32 s44, %d, 0\ns_sub_u32 s37, s37, s44" % (C * 4096, NV * 4096, NV * 4096))
    for e in range(4):
        A("s_waitcnt lgkmcnt(%d)" % (6 - 2 * e))
        A("v_mfma_f32_16x16x32_bf16 v[%d:%d], v[%d:%d], v[%d:%d], v[%d:%d]" % (O + 4 * e, O + 4 * e + 3, VF + 4 * e, VF + 4 * e + 3, P, P + 3, O + 4 * e, O + 4 * e + 3))
    A("ds_write_b32 v127, v3", "step q-4 consumed")
    A("L_nopv:")
    for k in range(4): A("v_cvt_pk_bf16_f32 v%d, v%d, v%d" % (P + k, S + 2 * k, S + 2 * k + 1))
    A("s_add_u32 s38, s38, %d" % C)
    A("s_cmp_lt_u32 s38, %d\ns_cbranch_scc1 L_cloop" % (NS - C))
    R("after pass %d+c: post P_a = P(%d+c), its max m_a and the O blocks at that scale (O is dead from here on)" % (EV, EV))
    A("ds_write_b128 v9, v[%d:%d]" % (P, P + 3))
    A("ds_write_b32 v128, v1")
    for i in range(4):
        for k in range(4): A("v_mul_f32 v%d, v%d, v121" % (O + 4 * i + k, O + 4 * i + k))
        A("ds_write_b128 v%d, v[%d:%d]" % (122 + i, O + 4 * i, O + 4 * i + 3))
    A("s_branch L_cloop")
    R("pass %d+c: post P_b and m_b, then finish column block c for the steps %d..%d" % (NS - C, EV, NS - 1))
    A("L_last:")
    for k in range(4): A("v_cvt_pk_bf16_f32 v%d, v%d, v%d" % (P + k, S + 2 * k, S + 2 * k + 1))
    A("ds_write_b32 v128, v1 offset:4")
    A("ds_write_b128 v9, v[%d:%d] offset:1024" % (P, P + 3))
    A("s_waitcnt lgkmcnt(0)")
    ST(3)
    A("s_barrier", "A")
    E = 136; PX = 32; LL = 144; OB = 148
    def rd(h, i):
        slot = (EV + 4 * h + i) % NV
        for tt in range(2):
            r = VF + 4 * i + 2 * tt
            A("ds_read_b64_tr_b16 v[%d:%d], v%d offset:%d" % (r, r + 1, VA, slot * 4096 + tt * 2048))
    for i in range(4): A("ds_read_b64 v[%d:%d], v11 offset:%d" % (E + 2 * i, E + 2 * i + 1, i * 256))
    def grp(i):
        A("ds_read_b128 v[%d:%d], v8 offset:%d" % (O + 4 * i, O + 4 * i + 3, i * 1024))
        A("ds_read_b128 v[%d:%d], v10 offset:%d" % (PX + 4 * i, PX + 4 * i + 3, i * 2048))
        rd(0, i)
    def mfa(i): A("v_mfma_f32_16x16x32_bf16 v[%d:%d], v[%d:%d], v[%d:%d], v[%d:%d]" % (O + 4 * i, O + 4 * i + 3, VF + 4 * i, VF + 4 * i + 3, PX + 4 * i, PX + 4 * i + 3, O + 4 * i, O + 4 * i + 3))
    grp(0); grp(1)
    A("v_mul_f32 v2, v2, v121")
    for k in range(0, 8, 2): A("v_add_f32 v%d, v%d, v%d" % (S + k, S + k, S + k + 1))
    A("v_add_f32 v%d, v%d, v%d\nv_add_f32 v%d, v%d, v%d" % (S, S, S + 2, S + 4, S + 4, S + 6))
    A("v_add_f32 v2, v2, v%d\nv_add_f32 v2, v2, v%d" % (S, S + 4))
    A("s_waitcnt lgkmcnt(8)")
    grp(2)
    A("v_mov_b32 v120, v2")
    A("v_max3_f32 v1, v%d, v%d, v%d" % (E + 1, E + 3, E + 5))
    A("v_max_f32 v1, v1, v%d" % (E + 7), "v1 = max of the whole row")
    A("v_permlane16_swap_b32 v2, v120\nv_add_f32 v2, v2, v120")
    A("s_waitcnt lgkmcnt(8)"); mfa(0)
    grp(3)
    A("v_mov_b32 v120, v2")
    for k in range(8): A("v_sub_f32 v%d, v%d, v1" % (E + k, E + k))
    A("v_permlane32_swap_b32 v2, v120\nv_add_f32 v2, v2, v120")
    A("s_waitcnt lgkmcnt(8)"); mfa(1)
    A("ds_write_b32 v128, v2 offset:8", "own l")
    for k in range(4): A("v_exp_f32 v%d, v%d" % (E + k, E + k))
    A("s_waitcnt lgkmcnt(5)"); mfa(2)
    for i in range(4): A("ds_read_b128 v[%d:%d], v10 offset:%d" % (PX + 16 + 4 * i, PX + 16 + 4 * i + 3, i * 2048 + 1024))
    for k in range(4, 8): A("v_exp_f32 v%d, v%d" % (E + k, E + k))
    A("s_waitcnt lgkmcnt(5)"); mfa(3)
    for k in range(4): A("v_mul_f32 v%d, v%d, v%d" % (O + k, O + k, E))
    for i in range(1, 4):
        for k in range(4): A("v_fmac_f32 v%d, v%d, v%d" % (O + k, E + 2 * i, O + 4 * i + k))
    A("s_waitcnt lgkmcnt(0)")
    ST(4)
    A("s_barrier", "B")
    ST(5)
    rd(1, 0)
    for i in range(4): A("ds_read_b32 v%d, v11 offset:%d" % (LL + i, i * 256 + 8))
    for i in range(1, 4): rd(1, i)
    def mfb(i):
        p = PX + 16 + 4 * i
        A("v_mfma_f32_16x16x32_bf16 v[%d:%d], v[%d:%d], v[%d:%d], 0" % (OB + 4 * i, OB + 4 * i + 3, VF + 4 * i, VF + 4 * i + 3, p, p + 3))
    A("s_waitcnt lgkmcnt(10)"); mfb(0)
    A("s_waitcnt lgkmcnt(4)"); mfb(1)
    A("v_mul_f32 v2, v%d, v%d" % (E + 1, LL))
    A("v_fmac_f32 v2, v%d, v%d" % (E + 3, LL + 1))
    A("s_waitcnt lgkmcnt(2)"); mfb(2)
    A("v_fmac_f32 v2, v%d, v%d" % (E + 5, LL + 2))
    A("v_fmac_f32 v2, v%d, v%d" % (E + 7, LL + 3))
    A("s_waitcnt lgkmcnt(0)"); mfb(3)
    A("v_rcp_f32 v2, v2")
    for i in range(4):
        for k in range(4): A("v_fmac_f32 v%d, v%d, v%d" % (O + k, E + 2 * i + 1, OB + 4 * i + k))
    for k in range(4): A("v_mul_f32 v%d, v%d, v2" % (O + k, O + k))
    A("v_cvt_pk_bf16_f32 v%d, v%d, v%d" % (O, O, O + 1))
    A("v_cvt_pk_bf16_f32 v%d, v%d, v%d" % (O + 1, O + 2, O + 3))
    A("buffer_store_dwordx2 v[%d:%d], v126, s[24:27], s47 offen" % (O, O + 1))
    if stamp:
        ST(7)
        A("s_waitcnt vmcnt(0)")
        ST(8)
        A("s_add_u32 s3, s3, 1")
        A("L_stamp:")
        A("s_getreg_b32 s50, hwreg(HW_REG_XCC_ID)")
        A("s_getreg_b32 s51, hwreg(HW_REG_HW_ID)")
        A("s_and_b32 s50, s50, 15\ns_or_b32 s50, s50, 0xabcd00")
        A("s_add_u32 s40, s40, 0x8000000\ns_addc_u32 s41, s41, 0")
        A("s_lshl_b32 s34, s2, 3\ns_add_u32 s34, s34, s3\ns_lshl_b32 s34, s34, 6")
        A("v_mov_b32 v8, s50\nv_mov_b32 v9, s51")
        for k in range(14): A("v_mov_b32 v%d, s%d" % (10 + k, 60 + 2 * k))
        A("v_mov_b32 v7, s34")
        A("v_cmp_eq_u32 vcc, 0, v5")
        A("s_and_saveexec_b64 s[52:53], vcc")
        for k in range(4): A("global_store_dwordx4 v7, v[%d:%d], s[40:41] offset:%d" % (8 + 4 * k, 11 + 4 * k, 16 * k))
    A("L_end:\ns_endpgm")
    A('.section .rodata,"a"\n.p2align 6\n.amdhsa_kernel %s' % KN)
    A("  .amdhsa_next_free_vgpr 168\n  .amdhsa_next_free_sgpr %d\n  .amdhsa_accum_offset 168" % (96 if stamp else 56))
    A("  .amdhsa_group_segment_fixed_size 0\n  .amdhsa_kernarg_size 48\n  .amdhsa_user_sgpr_count 2")
    A("  .amdhsa_user_sgpr_kernarg_segment_ptr 1\n  .amdhsa_system_sgpr_workgroup_id_x 1\n.end_amdhsa_kernel")
    open(path, "w").write("\n".join(L) + "\n")

if __name__ == "__main__":
    import mk
    gen("f4.s"); gen("f4b.s"); gen("f4_c25.s", rot=((4,1),(5,0),(0,4),(1,5)))
    gen("f4_w33.s", win=33); gen("f4_w40.s", win=40); gen("f4_l2.s", lead=2, n1=58); gen("f4_l2n56.s", lead=2, n1=56)
    mk.finish(["f3", "f4", "f4_c25", "f4b", "f4_w33", "f4_w40", "f4_l2", "f4_l2n56"], ["dev/bench2"])
```

```python
import sys, struct
KN = "standalone__gqa_softmax__sampling_kernel"
HDR = open("standalone__gqa_softmax__sampling.s.ref").read().split("; Override")[0]
def f2u(x): return struct.unpack("<I", struct.pack("<f", x))[0]
CSC = f2u(128 ** -0.5 * 1.4426950408889634)

DOC = """;
;
;
;"""

def gen(path, win=36, lead=4, NK=10, NV=12, n1=56, look=3, stamp=False, rot=((4, 1), (5, 0), (0, 5), (1, 4)), rep=2):
    L = []
    def A(x, c=None):
        if c is None: L.append(x)
        else:
            ls = x.split("\n"); ls[0] = "%-64s ; %s" % (ls[0], c); L.append("\n".join(ls))
    def R(c): L.append("; " + c)
    C = 4; NS = 64
    BACK = min(NV, NK + C - lead)
    KR = 0; VR = NK * 8192; INB = VR + NV * 4096
    PB = INB + 16384; STAT = PB + 8192; FL = STAT + 1024
    EV = NS - 2 * C
    LDS = FL + 1536
    assert LDS <= 163840 and NK > lead and NV >= 8
    DONE = FL; LK = FL + 1024
    def ST(k):
        if stamp: A("s_memrealtime s[%d:%d]\ns_waitcnt lgkmcnt(0)" % (60 + 2 * k, 61 + 2 * k))
    A(HDR.rstrip())
    A("; @launch grid=(256,1,1) block=(320,1,1) lds=%d" % LDS)
    A(DOC)
    R("LDS map: K ring %d x 8 KiB at 0 | V ring %d x 4 KiB at %d | Q tile, later 4 inboxes x 4 KiB at %d | P fragments at %d |" % (NK, NV, VR, INB, PB))
    R("         statistics at %d | done words (4 x 256 B) at %d | landed K at %d, landed V at %d" % (STAT, DONE, LK, LK + 256))
    A('.amdgcn_target "amdgcn-amd-amdhsa--gfx950"')
    A(".text\n.globl %s\n.p2align 8\n.type %s,@function\n%s:" % (KN, KN, KN))
    A("s_load_dwordx8 s[4:11], s[0:1], 0", "q, k, v, out")
    if stamp:
        A("s_memrealtime s[60:61]")
        A("s_load_dwordx2 s[40:41], s[0:1], 40")
    A("v_readfirstlane_b32 s3, v0")
    A("s_cmpk_ge_u32 s2, 0x100", "extra workgroups leave")
    A("s_cbranch_scc1 L_end")
    A("s_lshr_b32 s28, s2, 4\ns_and_b32 s29, s2, 7\ns_lshl3_add_u32 s28, s28, s29", "s28 = group")
    A("s_cmp_ge_u32 s3, 64")
    A("s_cbranch_scc0 L_prod")
    R("consumers pull this kernel's code into L2 with one load (one dword per 128-byte line)")
    A("s_getpc_b64 s[48:49]\nL_pc:")
    A("v_subrev_u32 v1, 64, v0")
    A("v_lshlrev_b32 v1, 7, v1")
    A("v_min_u32 v1, L_end-L_pc, v1")
    A("global_load_dword v167, v1, s[48:49]")
    A("s_branch L_cons")
    R("=================================================== producer (wave 0, v0 = lane)")
    A("L_prod:")
    A("v_and_b32 v6, 15, v0")
    A("v_lshrrev_b32 v7, 4, v0")
    A("v_xor_b32 v8, v6, v7")
    A("v_lshlrev_b32 v8, 4, v8")
    A("v_lshl_add_u32 v8, v7, 8, v8", "v8..v11: source offsets of a 16x256B tile, chunk ^= row")
    A("v_xor_b32 v9, 64, v8\nv_xor_b32 v10, 0x80, v8\nv_xor_b32 v11, 0xc0, v8")
    A("s_lshl_b32 s29, s28, 19\ns_lshl_b32 s28, s28, 12")
    A("s_mov_b32 s18, 0x80000\ns_mov_b32 s19, 0x20000\ns_mov_b32 s14, s18\ns_mov_b32 s15, 0x20000")
    R("the key order of a group is rotated (softmax does not care): workgroup bits 4,5 -> 0..3 steps, so that the pairs of one XCD do not")
    R("walk the channel interleave in phase; bits 0,1 -> 256 / 128 KiB, so that the four groups of a 2 MiB page sit in different DRAM bank phases")
    maxrot = 0
    if rot:
        for n_, (j, k) in enumerate(rot):
            A("s_bfe_u32 s%d, s2, 0x%x\ns_lshl_b32 s%d, s%d, %d" % (34 + min(n_, 1), 0x10000 | j, 34 + min(n_, 1), 34 + min(n_, 1), 13 + k))
            if n_: A("s_xor_b32 s34, s34, s35")
            maxrot |= 1 << k
    else: A("s_mov_b32 s34, 0")
    wrap_in_loop = n1 + lead - 1 + maxrot >= NS
    A("s_mov_b32 s35, s34")
    A("s_mov_b32 m0, %d" % INB)
    A("s_waitcnt lgkmcnt(0)")
    A("s_mov_b32 s12, s4\ns_mov_b32 s13, s5", "Q descriptor s[12:15]")
    for i in range(4): A("buffer_load_dwordx4 v%d, s[12:15], s28 offen offset:%d lds" % (8 + i, i * 1024))
    A("s_mov_b32 m0, 0")
    A("s_add_u32 s16, s6, s29\ns_addc_u32 s17, s7, 0", "K descriptor s[16:19]: this group's 512 KiB")
    assert lead + maxrot <= NS
    A("L_p0:", "first %d K units" % lead)
    if 8 * lead + 4 > win: A("s_waitcnt vmcnt(%d)" % (win - 4))
    for i in range(4): A("buffer_load_dwordx4 v%d, s[16:19], s34 offen offset:%d nt lds" % (8 + i, i * 1024))
    if maxrot + lead > NS - 1: raise SystemExit("wrap in prologue")
    A("s_add_u32 m0, m0, 0x1000\ns_addk_i32 s34, 0x1000\ns_cmp_lt_u32 m0, %d\ns_cbranch_scc1 L_p0" % (lead * 8192))
    if stamp:
        for k in range(1, 14): A("s_mov_b32 s%d, 0" % (60 + 2 * k))
    ST(11)
    A("s_setprio 3")
    A("s_bfe_u32 s30, s2, 0x10003", "column half")
    A("s_add_u32 s20, s8, s29\ns_addc_u32 s21, s9, 0\ns_mov_b32 s22, 0x80000\ns_mov_b32 s23, 0x20000", "V descriptor s[20:23]")
    A("v_lshrrev_b32 v2, 3, v0")
    A("v_and_b32 v3, 6, v2")
    A("v_and_b32 v4, 7, v0")
    A("v_xor_b32 v4, v4, v3")
    A("v_lshlrev_b32 v4, 4, v4")
    A("v_lshl_add_u32 v4, v2, 8, v4")
    A("s_lshl_b32 s44, s30, 7")
    A("v_add_u32 v12, s44, v4", "v12..v15: 8 half rows per load, chunk ^= row&6 (offset: adds i*1024 more)")
    A("v_add_u32 v13, 0x400, v12\nv_add_u32 v14, 0x800, v12\nv_add_u32 v15, 0xc00, v12")
    A("v_mov_b32 v20, 0\nv_mov_b32 v21, 0\nv_mov_b32 v22, 0\nv_mov_b32 v23, 0", "zero the hand-over words")
    A("v_lshlrev_b32 v24, 4, v0\nv_add_u32 v24, %d, v24\nds_write_b128 v24, v[20:23]" % DONE)
    A("v_lshlrev_b32 v16, 2, v0\nv_add_u32 v16, %d, v16" % LK, "v16: publish address")
    A("ds_write_b32 v16, v20\nds_write_b32 v16, v20 offset:256")
    A("v_and_b32 v17, 3, v0\nv_lshlrev_b32 v17, 8, v17\nv_add_u32 v17, %d, v17" % DONE, "lane l reads done[l&3]")
    A("s_mov_b32 s36, %d\ns_mov_b32 s37, %d" % (lead * 8192, VR), "s34/s35 source offsets, s36/s37 LDS slots")
    A("s_mov_b32 s38, 0")
    A("v_mov_b32 v18, 0")
    A("s_waitcnt lgkmcnt(0)")
    A("s_barrier", "hand-over words are zero")
    def wait_pub(pos, hooks):
        A("s_waitcnt vmcnt(%d)" % (win - 1))
        if pos in hooks: hooks[pos]()
    def kunit(hooks, base=0, wrap=False):
        if wrap: A("s_and_b32 s34, s34, 0x7ffff")
        for i in range(4):
            wait_pub(base + i, hooks)
            A("buffer_load_dwordx4 v%d, s[16:19], s34 offen offset:%d nt lds" % (8 + i, i * 1024))
        A("s_add_u32 m0, m0, 4096")
        A("s_add_u32 s44, s34, 4096")
        for i in range(4):
            wait_pub(base + 4 + i, hooks)
            A("buffer_load_dwordx4 v%d, s[16:19], s44 offen offset:%d nt lds" % (8 + i, i * 1024))
        A("s_add_u32 s34, s34, 8192")
        A("s_add_u32 s36, s36, 8192\ns_cmp_eq_u32 s36, %d\ns_cselect_b32 s36, %d, s36" % (KR + NK * 8192, KR))
    def vunit(hooks, base=8, wrap=False):
        if wrap: A("s_and_b32 s35, s35, 0x7ffff")
        A("s_mov_b32 m0, s37")
        A("s_add_u32 s37, s37, 4096\ns_cmp_eq_u32 s37, %d\ns_cselect_b32 s37, %d, s37" % (VR + NV * 4096, VR))
        for i in range(4):
            wait_pub(base + i, hooks)
            A("buffer_load_dwordx4 v%d, s[20:23], s35 offen offset:%d nt lds" % (12 + i, i * 1024))
        A("s_add_u32 s35, s35, 8192")
    assert n1 % rep == 0
    PER = 12 * rep
    seq = []
    for u in range(lead): seq += [("K", u)] * 8
    for i in range(0, n1, rep):
        for r in range(rep): seq += [("K", i + lead + r)] * 8
        for r in range(rep): seq += [("V", i + r)] * 4
    nloop = len(seq)
    tail = [("K", u) for u in range(n1 + lead, NS)] + [("V", u) for u in range(n1, NS)]
    for kind, u in tail: seq += [(kind, u)] * (8 if kind == "K" else 4)
    total = len(seq)
    def landed(nl):
        k = v = 0
        for idx in range(max(0, nl)):
            kind, u = seq[idx]
            if idx + 1 == total or seq[idx + 1] != seq[idx]:
                if kind == "K": k = u + 1
                else: v = u + 1
        return k, v
    sites = {}
    for r in range(rep):
        d, p = divmod(8 * r + 7 + win, PER); sites.setdefault(p, []).append(("K", lead + r + 1 - rep * d, d))
        d, p = divmod(8 * rep + 4 * r + 3 + win, PER); sites.setdefault(p, []).append(("V", r + 1 - rep * d, d))
    def true_landed(i, pos): return landed(8 * lead + PER * (i // rep) + pos - win + 1)
    A(".p2align 3\nL_ploop:")
    R("s38 = first V unit of this iteration.  Steps up to s38+%d must be consumed (done words were read one iteration ago)." % (rep - 1 - BACK))
    npub = sum(len(v) for v in sites.values())
    A("s_sub_u32 s39, s38, %d" % (BACK - rep + 1))
    for r in range(rep):
        if r: A("s_sub_u32 s%d, s39, %d" % (50 + r, r))
        A("s_and_b32 s%d, s%d, 3" % (50 + r, 39 if r == 0 else 50 + r))
    A("s_waitcnt lgkmcnt(%d)" % npub)
    A("L_fc:")
    for r in range(rep): A("v_readlane_b32 s%d, v18, s%d" % (46 + r, 50 + r))
    A("ds_read_b32 v18, v17")
    A("s_nop 1")
    for r in range(1, rep): A("s_add_u32 s%d, s%d, %d\ns_min_i32 s46, s46, s%d" % (46 + r, 46 + r, r, 46 + r))
    A("s_cmp_gt_i32 s46, s39")
    A("s_cbranch_scc1 L_fd")
    A("s_waitcnt lgkmcnt(0)")
    A("s_branch L_fc")
    A("L_fd:")
    emitted = {}
    def mkhook(pos):
        def hook():
            for kind, c, d in sites[pos]:
                A("s_add_u32 s45, s38, %d" % c, "%s steps landed" % kind)
                vals = {}
                fix = []
                for i in range(0, n1, rep):
                    t = true_landed(i, pos)[0 if kind == "K" else 1]
                    v = i + c
                    if v < 0 or v > t: fix.append((i, t)); v = t
                    vals[i] = v
                if fix and all(i + c <= 0 and t == 0 for i, t in fix): A("s_max_i32 s45, s45, 0")
                else:
                    for i, t in fix: A("s_cmp_eq_u32 s38, %d\ns_cselect_b32 s45, %d, s45" % (i, t))
                emitted[(pos, kind, c)] = vals
                if kind == "K": A("v_mov_b32 v19, s45\nds_write_b32 v16, v19")
                else: A("v_mov_b32 v20, s45\nds_write_b32 v16, v20 offset:256")
        return hook
    hooks = {p: mkhook(p) for p in sites}
    for r in range(rep):
        if r: A("s_mov_b32 m0, s36")
        kunit(hooks, 8 * r, wrap=wrap_in_loop)
    for r in range(rep): vunit(hooks, 8 * rep + 4 * r, wrap=wrap_in_loop)
    A("s_mov_b32 m0, s36")
    A("s_add_u32 s38, s38, %d\ns_cmp_lt_u32 s38, %d\ns_cbranch_scc1 L_ploop" % (rep, n1))
    cur = {"K": 0, "V": 0}
    for i in range(0, n1, rep):
        t = i + rep - 1 - BACK
        if t >= 0: assert cur["V"] >= t + 1 and cur["K"] >= t + C + 1, ("deadlock in loop", i, cur)
        assert i + rep - 1 - NV <= t and i + rep - 1 + lead - NK - C <= t
        for pos in sorted(sites):
            for kind, c, d in sites[pos]:
                v = emitted[(pos, kind, c)][i]
                assert 0 <= v <= true_landed(i, pos)[0 if kind == "K" else 1]
                cur[kind] = v
    R("tail: the remaining K units first (their softmax then overlaps the last V units), then the remaining V units")
    def pub_const(nl):
        k, v = landed(nl)
        v = min(v, EV)
        if k > cur["K"]:
            A("v_mov_b32 v19, %d\nds_write_b32 v16, v19" % k); cur["K"] = k
        if v > cur["V"]:
            A("v_mov_b32 v20, %d\nds_write_b32 v16, v20 offset:256" % v); cur["V"] = v
    n = nloop
    ver = n1 - 1 - BACK
    needs = [(u - NV if kind == "V" else u - NK - C) for kind, u in tail]
    for ti, (kind, u) in enumerate(tail):
        if needs[ti] > ver:
            t = min(max(needs[ti:]), needs[ti] + look)
            assert t < EV and cur["V"] >= t + 1 and cur["K"] >= t + C + 1, ("deadlock", kind, u, dict(cur))
            A("L_tc%d:\ns_waitcnt lgkmcnt(0)" % t, "all steps <= %d consumed?" % t)
            for c in range(4): A("v_readlane_b32 s%d, v18, %d" % (46 + c, c))
            A("ds_read_b32 v18, v17\ns_nop 1")
            A("s_min_u32 s46, s46, s47\ns_min_u32 s48, s48, s49\ns_min_u32 s46, s46, s48")
            A("s_cmp_ge_u32 s46, %d\ns_cbranch_scc0 L_tc%d" % (t - 2, t), "every step < min(done) + 3 is consumed")
            ver = t
        if ti + 1 < len(tail) and needs[ti + 1] > ver: A("ds_read_b32 v18, v17")
        cnt = 8 if kind == "K" else 4
        hk = {}
        for p in range(cnt):
            hk[p] = (lambda q: (lambda: pub_const(q - win + 1)))(n + p)
        R("%s unit %d" % (kind, u))
        if kind == "K":
            A("s_mov_b32 m0, s36")
            kunit(hk, 0, wrap=(u + maxrot >= NS))
        else: vunit(hk, 0, wrap=(u + maxrot >= NS))
        n += cnt
    ST(1)
    x = win - 1
    while cur["K"] < NS or cur["V"] < EV:
        nl = total - x
        k, v = landed(nl); v = min(v, EV)
        if k > cur["K"] or v > cur["V"]:
            A("s_waitcnt vmcnt(%d)" % x)
            pub_const(nl)
        x -= 1
    ST(2)
    yb1 = total - 1 - max(idx for idx in range(total) if seq[idx] == ("V", EV + C - 1))
    A("s_waitcnt vmcnt(%d) lgkmcnt(0)" % yb1)
    ST(5)
    A("s_barrier", "A: V units %d..%d landed" % (EV, EV + C - 1))
    ST(3)
    A("s_waitcnt vmcnt(0)")
    ST(4)
    A("s_barrier", "B: everything landed")
    if stamp: A("s_mov_b32 s3, 0\nv_mov_b32 v5, v0\ns_branch L_stamp")
    A("s_endpgm")
    R("=================================================== consumers (waves 1..4)")
    Q = 16; KF = 32; S = 64; P = 72; VF = 76; O = 92; VA = 108
    R("v16..31 Q | v32..63 K fragments | v64..71 scores | v72..75 P | v76..91 V^T fragments | v92..107 O^T | v1 max, v2 sum, v121 alpha")
    A("L_cons:")
    A("s_barrier")
    A("s_lshr_b32 s3, s3, 6\ns_sub_u32 s3, s3, 1", "s3 = consumer c")
    A("s_bfe_u32 s30, s2, 0x10003")
    A("v_and_b32 v5, 63, v0")
    A("v_and_b32 v6, 15, v5")
    A("v_lshrrev_b32 v7, 4, v5")
    A("s_lshl_b32 s28, s28, 12")
    A("s_mov_b32 s26, 0x80000\ns_mov_b32 s27, 0x20000")
    A("s_mov_b32 s31, 0x%x" % CSC, "log2(e) / sqrt(128)")
    A("v_xor_b32 v12, v6, v7\nv_lshlrev_b32 v12, 4, v12\nv_lshl_add_u32 v12, v6, 8, v12", "v12..15: K / Q fragment read offsets")
    A("v_xor_b32 v13, 64, v12\nv_xor_b32 v14, 0x80, v12\nv_xor_b32 v15, 0xc0, v12")
    A("s_lshl_b32 s44, s3, 8\ns_add_u32 s44, s44, %d" % DONE)
    A("v_lshl_add_u32 v127, v5, 2, s44", "own done block")
    A("s_waitcnt lgkmcnt(0)")
    if stamp:
        for k in range(1, 14): A("s_mov_b32 s%d, 0" % (60 + 2 * k))
    A("s_mov_b32 s24, s10\ns_mov_b32 s25, s11", "out descriptor s[24:27]")
    A("v_lshrrev_b32 v2, 2, v5")
    A("v_and_b32 v4, 6, v2")
    A("v_bfe_u32 v1, v5, 1, 1")
    A("v_xor_b32 v4, v4, v1")
    A("v_lshlrev_b32 v4, 4, v4")
    A("v_lshl_add_u32 v4, v2, 7, v4")
    A("v_and_b32 v1, 1, v5")
    A("v_lshl_add_u32 v4, v1, 3, v4")
    A("s_lshl_b32 s44, s3, 5")
    A("v_xor_b32 v4, s44, v4")
    A("v_add_u32 v%d, %d, v4" % (VA, VR), "v108..111: V^T read addresses, accumulator i = column block c^i")
    for e in range(1, 4): A("v_xor_b32 v%d, %d, v%d" % (VA + e, 32 * e, VA))
    A("v_lshlrev_b32 v8, 4, v5")
    A("s_lshl_b32 s45, s3, 10")
    for i in range(4):
        A("s_xor_b32 s44, s3, %d\ns_lshl_b32 s44, s44, 12\ns_add_u32 s44, s44, s45\ns_add_u32 s44, s44, %d" % (i, INB))
        A("v_add_u32 v%d, s44, v8" % (122 + i), "accumulator %d goes to inbox c^%d, position c" % (i, i))
    A("s_lshl_b32 s44, s3, 11\ns_add_u32 s44, s44, %d\nv_add_u32 v9, s44, v8" % PB, "v9 own P area, v10 P area 0, v8 own inbox")
    A("v_add_u32 v10, %d, v8" % PB)
    A("s_lshl_b32 s44, s3, 12\ns_add_u32 s44, s44, %d\nv_add_u32 v8, s44, v8" % INB)
    A("v_lshlrev_b32 v11, 4, v6\nv_add_u32 v11, %d, v11" % STAT, "statistics: (m_a, m_b, l) per consumer and query")
    A("s_lshl_b32 s44, s3, 8\nv_add_u32 v128, s44, v11")
    A("v_lshlrev_b32 v126, 8, v6")
    A("v_lshl_add_u32 v126, v7, 3, v126", "output offset")
    A("s_lshl_b32 s47, s3, 5\ns_lshl_b32 s45, s30, 7\ns_add_u32 s47, s47, s45\ns_add_u32 s47, s47, s28")
    A("v_mov_b32 v4, %d" % LK)
    for k in range(16): A("v_mov_b32 v%d, 0" % (O + k))
    A("v_mov_b32 v1, 0xff800000")
    A("v_mov_b32 v2, 0")
    A("s_lshl_b32 s36, s3, 13\ns_lshl_b32 s37, s3, 12", "K / V slot offsets")
    A("s_mov_b32 s38, s3", "q")
    A("s_mov_b32 s43, 0")
    A("v_mov_b32 v121, 0")
    for j in range(4): A("v_add_u32 v%d, %d, v%d" % (112 + j, INB, 12 + j))
    ST(2)
    A("L_pq0:", "Q was issued before K unit 0")
    A("ds_read_b32 v3, v4\ns_waitcnt lgkmcnt(0)\nv_readfirstlane_b32 s42, v3")
    A("s_cmp_gt_u32 s42, 0\ns_cbranch_scc0 L_pq0")
    for j in range(4): A("ds_read_b128 v[%d:%d], v%d" % (Q + 4 * j, Q + 4 * j + 3, 112 + j))
    A(".p2align 3\nL_cloop:")
    for j in range(4): A("v_add_u32 v%d, s36, v%d" % (112 + j, 12 + j))
    A("s_branch L_pk1")
    A("L_pk0:")
    A("ds_read_b32 v3, v4\ns_waitcnt lgkmcnt(0)\nv_readfirstlane_b32 s42, v3")
    A("L_pk1:\ns_cmp_gt_u32 s42, s38\ns_cbranch_scc0 L_pk0")
    for tt in range(2):
        for j in range(4):
            r = KF + 16 * tt + 4 * j
            A("ds_read_b128 v[%d:%d], v%d offset:%d" % (r, r + 3, 112 + j, tt * 4096))
    R("O to the scale of step q-4")
    for k in range(16): A("v_mul_f32 v%d, v%d, v121" % (O + k, O + k))
    for e in range(4): A("v_add_u32 v%d, s37, v%d" % (116 + e, VA + e))
    A("s_add_u32 s36, s36, %d\ns_cmp_ge_u32 s36, %d\ns_cselect_b32 s44, %d, 0\ns_sub_u32 s36, s36, s44" % (C * 8192, NK * 8192, NK * 8192))
    for tt in range(2):
        for j in range(4):
            r = KF + 16 * tt + 4 * j
            A("s_waitcnt lgkmcnt(%d)" % (7 - 4 * tt - j))
            c = "0" if j == 0 else "v[%d:%d]" % (S + 4 * tt, S + 4 * tt + 3)
            A("v_mfma_f32_16x16x32_bf16 v[%d:%d], v[%d:%d], v[%d:%d], %s" % (S + 4 * tt, S + 4 * tt + 3, r, r + 3, Q + 4 * j, Q + 4 * j + 3, c))
    R("row max of the raw scores; scores * scale fill the wait states (tile 1 is read 8 states after its last MFMA)")
    A("v_max3_f32 v3, v%d, v%d, v%d" % (S, S + 1, S + 2))
    A("v_max_f32 v3, v3, v%d" % (S + 3))
    for k in range(4): A("v_mul_f32 v%d, s31, v%d" % (S + k, S + k))
    A("s_nop 1")
    A("v_max3_f32 v3, v3, v%d, v%d" % (S + 4, S + 5))
    A("v_max3_f32 v3, v3, v%d, v%d" % (S + 6, S + 7))
    A("v_mov_b32 v120, v3")
    for k in range(4, 6): A("v_mul_f32 v%d, s31, v%d" % (S + k, S + k))
    A("v_permlane16_swap_b32 v3, v120\nv_max_f32 v3, v3, v120")
    A("v_mov_b32 v120, v3")
    for k in range(6, 8): A("v_mul_f32 v%d, s31, v%d" % (S + k, S + k))
    A("v_permlane32_swap_b32 v3, v120\nv_max_f32 v3, v3, v120")
    A("v_mul_f32 v3, s31, v3", "rounds like the largest scaled score: x - max <= 0, = 0 at the max")
    A("v_max_f32 v3, v3, v1", "v3 = new running max (scaled)")
    for k in range(8): A("v_sub_f32 v%d, v%d, v3" % (S + k, S + k))
    A("v_sub_f32 v121, v1, v3")
    A("v_mov_b32 v1, v3")
    for k in range(8): A("v_exp_f32 v%d, v%d" % (S + k, S + k))
    A("v_exp_f32 v121, v121")
    A("s_cmp_ge_u32 s38, %d\ns_cbranch_scc1 L_last" % (NS - C))
    A("v_mul_f32 v2, v2, v121")
    for k in range(8): A("v_add_f32 v2, v2, v%d" % (S + k))
    A("s_sub_u32 s39, s38, %d" % C, "PV step q-4 (none in the first pass)")
    A("s_cbranch_scc1 L_nopv")
    A("s_branch L_pv1")
    A("L_pv0:")
    A("ds_read_b32 v3, v4 offset:256\ns_waitcnt lgkmcnt(0)\nv_readfirstlane_b32 s43, v3")
    A("L_pv1:\ns_cmp_gt_u32 s43, s39\ns_cbranch_scc0 L_pv0")
    for e in range(4):
        for tt in range(2):
            r = VF + 4 * e + 2 * tt
            A("ds_read_b64_tr_b16 v[%d:%d], v%d offset:%d" % (r, r + 1, 116 + e, tt * 2048))
    A("s_add_u32 s39, s39, 1")
    A("v_mov_b32 v3, s39")
    A("s_add_u32 s37, s37, %d\ns_cmp_ge_u32 s37, %d\ns_cselect_b32 s44, %d, 0\ns_sub_u32 s37, s37, s44" % (C * 4096, NV * 4096, NV * 4096))
    for e in range(4):
        A("s_waitcnt lgkmcnt(%d)" % (6 - 2 * e))
        A("v_mfma_f32_16x16x32_bf16 v[%d:%d], v[%d:%d], v[%d:%d], v[%d:%d]" % (O + 4 * e, O + 4 * e + 3, VF + 4 * e, VF + 4 * e + 3, P, P + 3, O + 4 * e, O + 4 * e + 3))
    A("ds_write_b32 v127, v3", "step q-4 consumed")
    A("L_nopv:")
    for k in range(4): A("v_cvt_pk_bf16_f32 v%d, v%d, v%d" % (P + k, S + 2 * k, S + 2 * k + 1))
    A("s_add_u32 s38, s38, %d" % C)
    A("s_cmp_lt_u32 s38, %d\ns_cbranch_scc1 L_cloop" % (NS - C))
    R("after pass %d+c: post P_a = P(%d+c), its max m_a and the O blocks at that scale (O is dead from here on)" % (EV, EV))
    A("ds_write_b128 v9, v[%d:%d]" % (P, P + 3))
    A("ds_write_b32 v128, v1")
    for i in range(4):
        for k in range(4): A("v_mul_f32 v%d, v%d, v121" % (O + 4 * i + k, O + 4 * i + k))
        A("ds_write_b128 v%d, v[%d:%d]" % (122 + i, O + 4 * i, O + 4 * i + 3))
    A("s_branch L_cloop")
    R("pass %d+c: post P_b and m_b, then finish column block c for the steps %d..%d" % (NS - C, EV, NS - 1))
    A("L_last:")
    for k in range(4): A("v_cvt_pk_bf16_f32 v%d, v%d, v%d" % (P + k, S + 2 * k, S + 2 * k + 1))
    A("ds_write_b32 v128, v1 offset:4")
    A("ds_write_b128 v9, v[%d:%d] offset:1024" % (P, P + 3))
    A("s_waitcnt lgkmcnt(0)")
    ST(3)
    A("s_barrier", "A")
    E = 136; PX = 32; LL = 144; OB = 148
    def rd(h, i):
        slot = (EV + 4 * h + i) % NV
        for tt in range(2):
            r = VF + 4 * i + 2 * tt
            A("ds_read_b64_tr_b16 v[%d:%d], v%d offset:%d" % (r, r + 1, VA, slot * 4096 + tt * 2048))
    for i in range(4): A("ds_read_b64 v[%d:%d], v11 offset:%d" % (E + 2 * i, E + 2 * i + 1, i * 256))
    def grp(i):
        A("ds_read_b128 v[%d:%d], v8 offset:%d" % (O + 4 * i, O + 4 * i + 3, i * 1024))
        A("ds_read_b128 v[%d:%d], v10 offset:%d" % (PX + 4 * i, PX + 4 * i + 3, i * 2048))
        rd(0, i)
    def mfa(i): A("v_mfma_f32_16x16x32_bf16 v[%d:%d], v[%d:%d], v[%d:%d], v[%d:%d]" % (O + 4 * i, O + 4 * i + 3, VF + 4 * i, VF + 4 * i + 3, PX + 4 * i, PX + 4 * i + 3, O + 4 * i, O + 4 * i + 3))
    grp(0); grp(1)
    A("v_mul_f32 v2, v2, v121")
    for k in range(0, 8, 2): A("v_add_f32 v%d, v%d, v%d" % (S + k, S + k, S + k + 1))
    A("v_add_f32 v%d, v%d, v%d\nv_add_f32 v%d, v%d, v%d" % (S, S, S + 2, S + 4, S + 4, S + 6))
    A("v_add_f32 v2, v2, v%d\nv_add_f32 v2, v2, v%d" % (S, S + 4))
    A("s_waitcnt lgkmcnt(8)")
    grp(2)
    A("v_mov_b32 v120, v2")
    A("v_max3_f32 v1, v%d, v%d, v%d" % (E + 1, E + 3, E + 5))
    A("v_max_f32 v1, v1, v%d" % (E + 7), "v1 = max of the whole row")
    A("v_permlane16_swap_b32 v2, v120\nv_add_f32 v2, v2, v120")
    A("s_waitcnt lgkmcnt(8)"); mfa(0)
    grp(3)
    A("v_mov_b32 v120, v2")
    for k in range(8): A("v_sub_f32 v%d, v%d, v1" % (E + k, E + k))
    A("v_permlane32_swap_b32 v2, v120\nv_add_f32 v2, v2, v120")
    A("s_waitcnt lgkmcnt(8)"); mfa(1)
    A("ds_write_b32 v128, v2 offset:8", "own l")
    for k in range(4): A("v_exp_f32 v%d, v%d" % (E + k, E + k))
    A("s_waitcnt lgkmcnt(5)"); mfa(2)
    for i in range(4): A("ds_read_b128 v[%d:%d], v10 offset:%d" % (PX + 16 + 4 * i, PX + 16 + 4 * i + 3, i * 2048 + 1024))
    for k in range(4, 8): A("v_exp_f32 v%d, v%d" % (E + k, E + k))
    A("s_waitcnt lgkmcnt(5)"); mfa(3)
    for k in range(4): A("v_mul_f32 v%d, v%d, v%d" % (O + k, O + k, E))
    for i in range(1, 4):
        for k in range(4): A("v_fmac_f32 v%d, v%d, v%d" % (O + k, E + 2 * i, O + 4 * i + k))
    A("s_waitcnt lgkmcnt(0)")
    ST(4)
    A("s_barrier", "B")
    ST(5)
    rd(1, 0)
    for i in range(4): A("ds_read_b32 v%d, v11 offset:%d" % (LL + i, i * 256 + 8))
    for i in range(1, 4): rd(1, i)
    def mfb(i):
        p = PX + 16 + 4 * i
        A("v_mfma_f32_16x16x32_bf16 v[%d:%d], v[%d:%d], v[%d:%d], 0" % (OB + 4 * i, OB + 4 * i + 3, VF + 4 * i, VF + 4 * i + 3, p, p + 3))
    A("s_waitcnt lgkmcnt(10)"); mfb(0)
    A("s_waitcnt lgkmcnt(4)"); mfb(1)
    A("v_mul_f32 v2, v%d, v%d" % (E + 1, LL))
    A("v_fmac_f32 v2, v%d, v%d" % (E + 3, LL + 1))
    A("s_waitcnt lgkmcnt(2)"); mfb(2)
    A("v_fmac_f32 v2, v%d, v%d" % (E + 5, LL + 2))
    A("v_fmac_f32 v2, v%d, v%d" % (E + 7, LL + 3))
    A("s_waitcnt lgkmcnt(0)"); mfb(3)
    A("v_rcp_f32 v2, v2")
    for i in range(4):
        for k in range(4): A("v_fmac_f32 v%d, v%d, v%d" % (O + k, E + 2 * i + 1, OB + 4 * i + k))
    for k in range(4): A("v_mul_f32 v%d, v%d, v2" % (O + k, O + k))
    A("v_cvt_pk_bf16_f32 v%d, v%d, v%d" % (O, O, O + 1))
    A("v_cvt_pk_bf16_f32 v%d, v%d, v%d" % (O + 1, O + 2, O + 3))
    A("buffer_store_dwordx2 v[%d:%d], v126, s[24:27], s47 offen" % (O, O + 1))
    if stamp:
        ST(7)
        A("s_waitcnt vmcnt(0)")
        ST(8)
        A("s_add_u32 s3, s3, 1")
        A("L_stamp:")
        A("s_getreg_b32 s50, hwreg(HW_REG_XCC_ID)")
        A("s_getreg_b32 s51, hwreg(HW_REG_HW_ID)")
        A("s_and_b32 s50, s50, 15\ns_or_b32 s50, s50, 0xabcd00")
        A("s_add_u32 s40, s40, 0x8000000\ns_addc_u32 s41, s41, 0")
        A("s_lshl_b32 s34, s2, 3\ns_add_u32 s34, s34, s3\ns_lshl_b32 s34, s34, 6")
        A("v_mov_b32 v8, s50\nv_mov_b32 v9, s51")
        for k in range(14): A("v_mov_b32 v%d, s%d" % (10 + k, 60 + 2 * k))
        A("v_mov_b32 v7, s34")
        A("v_cmp_eq_u32 vcc, 0, v5")
        A("s_and_saveexec_b64 s[52:53], vcc")
        for k in range(4): A("global_store_dwordx4 v7, v[%d:%d], s[40:41] offset:%d" % (8 + 4 * k, 11 + 4 * k, 16 * k))
    A("L_end:\ns_endpgm")
    A('.section .rodata,"a"\n.p2align 6\n.amdhsa_kernel %s' % KN)
    A("  .amdhsa_next_free_vgpr 168\n  .amdhsa_next_free_sgpr %d\n  .amdhsa_accum_offset 168" % (96 if stamp else 56))
    A("  .amdhsa_group_segment_fixed_size 0\n  .amdhsa_kernarg_size 48\n  .amdhsa_user_sgpr_count 2")
    A("  .amdhsa_user_sgpr_kernarg_segment_ptr 1\n  .amdhsa_system_sgpr_workgroup_id_x 1\n.end_amdhsa_kernel")
    open(path, "w").write("\n".join(L) + "\n")

if __name__ == "__main__":
    import mk
    gen("f5.s"); gen("f5b.s"); gen("f5_r1.s", rep=1); gen("f5_w32.s", win=32); gen("f5_w40.s", win=40); gen("f5_n58.s", n1=58); gen("f5_n60.s", n1=60)
    gen("f5_st.s", stamp=True)
    mk.finish(["f4", "f5", "f5_r1", "f5b", "f5_w32", "f5_w40", "f5_n58", "f5_n60", "f4b"], ["dev/bench2"])
```
